```python
import torch

def _softmax(x, axis=-1):
    return torch.softmax(x, dim=axis)
def _gelu(x):
    return torch.nn.functional.gelu(x, approximate="tanh")
def _silu(x):
    return torch.nn.functional.silu(x)
def _sigmoid(x):
    return torch.sigmoid(x)
def _layernorm(x, axis=-1, eps=1e-5):
    m = x.mean(dim=axis, keepdim=True)
    v = x.var(dim=axis, keepdim=True, unbiased=False)
    return (x - m) / torch.sqrt(v + eps)
def _scatter_add(tgt, idx, src, axis=0):
    return tgt.clone().index_add_(axis, idx, src)
def _segment_sum(src, seg, n):
    out = torch.zeros((n,) + src.shape[1:], dtype=src.dtype)
    return out.index_add_(0, seg, src)
def _pad(x, pw):
    flat = tuple(v for pair in reversed(pw) for v in pair)
    return torch.nn.functional.pad(x, flat)

kernel_name = 'concat_heads__linear_kernel_hedgehog__linear_kernel_hedgehog__prompt'

def setup_inputs():

    _w = (lambda a: (lambda t: t.to(torch.bfloat16) if t.is_floating_point() else t)(torch.as_tensor(a)))
    def _A_setup():
        B, S, D, H = 1, 2048, 512, 32
        Dh = D // H
        return {
            "x": _w((lambda *s: torch.randn(*s, dtype=torch.bfloat16) * 0.4)(B, S, D)),
            "wqkv": _w((lambda *s: torch.randn(*s, dtype=torch.bfloat16) * 0.4)(D, 3 * D)),
            "w_phi": _w((lambda *s: torch.randn(*s, dtype=torch.bfloat16) * 0.4)(H, Dh, Dh) * (Dh ** -0.5)),
            "wo": _w((lambda *s: torch.randn(*s, dtype=torch.bfloat16) * 0.05)(D, D)),
        }
    _A_in = _A_setup()

    def _B_setup():
        B, S, D, H = 1, 2048, 512, 32
        Dh = D // H
        return {
            "x": _w((lambda *s: torch.randn(*s, dtype=torch.bfloat16) * 0.4)(B, S, D)),
            "wqkv": _w((lambda *s: torch.randn(*s, dtype=torch.bfloat16) * 0.4)(D, 3 * D)),
            "w_phi": _w((lambda *s: torch.randn(*s, dtype=torch.bfloat16) * 0.4)(H, Dh, Dh) * (Dh ** -0.5)),
            "wo": _w((lambda *s: torch.randn(*s, dtype=torch.bfloat16) * 0.05)(D, D)),
        }
    _B_in = _B_setup()

    return {
        "A_x": _A_in["x"],
        "A_wqkv": _A_in["wqkv"],
        "A_w_phi": _A_in["w_phi"],
        "A_wo": _A_in["wo"],
        "B_x": _B_in["x"],
        "B_wqkv": _B_in["wqkv"],
        "B_w_phi": _B_in["w_phi"],
        "B_wo": _B_in["wo"],
    }

def reference(A_x, A_wqkv, A_w_phi, A_wo, B_x, B_wqkv, B_w_phi, B_wo):
    def _A_ref(x, wqkv, w_phi, wo):
        B, S, D = x.shape
        H = 32; Dh = D // H
        qkv = (lambda x, *d: x.permute(*d))((x @ wqkv).reshape(B, S, 3, H, Dh), 2, 0, 3, 1, 4)
        q, k, v = qkv[0], qkv[1], qkv[2]
        pq = torch.einsum("bhsd,hdf->bhsf", q, w_phi)
        pk = torch.einsum("bhsd,hdf->bhsf", k, w_phi)
        phi_q = torch.concatenate([_softmax(pq, axis=-1), _softmax(-pq, axis=-1)], axis=-1)
        phi_k = torch.concatenate([_softmax(pk, axis=-1), _softmax(-pk, axis=-1)], axis=-1)
        kv = torch.einsum("bhsf,bhsd->bhfd", phi_k, v)
        z  = torch.einsum("bhsf->bhf", phi_k)
        num = torch.einsum("bhqf,bhfd->bhqd", phi_q, kv)
        den = torch.einsum("bhqf,bhf->bhq", phi_q, z)[..., None] + 1e-6
        o = num / den
        return (lambda x, *d: x.permute(*d))(o, 0, 2, 1, 3).reshape(B, S, D) @ wo

    def _B_ref(x, wqkv, w_phi, wo):
        B, S, D = x.shape
        H = 32; Dh = D // H
        qkv = (lambda x, *d: x.permute(*d))((x @ wqkv).reshape(B, S, 3, H, Dh), 2, 0, 3, 1, 4)
        q, k, v = qkv[0], qkv[1], qkv[2]
        pq = torch.einsum("bhsd,hdf->bhsf", q, w_phi)
        pk = torch.einsum("bhsd,hdf->bhsf", k, w_phi)
        phi_q = torch.concatenate([_softmax(pq, axis=-1), _softmax(-pq, axis=-1)], axis=-1)
        phi_k = torch.concatenate([_softmax(pk, axis=-1), _softmax(-pk, axis=-1)], axis=-1)
        kv = torch.einsum("bhsf,bhsd->bhfd", phi_k, v)
        z  = torch.einsum("bhsf->bhf", phi_k)
        num = torch.einsum("bhqf,bhfd->bhqd", phi_q, kv)
        den = torch.einsum("bhqf,bhf->bhq", phi_q, z)[..., None] + 1e-6
        o = num / den
        return (lambda x, *d: x.permute(*d))(o, 0, 2, 1, 3).reshape(B, S, D) @ wo

    a = _A_ref(A_x, A_wqkv, A_w_phi, A_wo)
    b = _B_ref(B_x, B_wqkv, B_w_phi, B_wo)
    return torch.concatenate([a, b], axis=-1)
```

```python
import re
NAME = "concat_heads__linear_kernel_hedgehog__linear_kernel_hedgehog__prompt"

_REG = re.compile(r'^(-|\|)?(abs\()?([vas])(?:(\d+)|\[(\d+):(\d+)\])')

def regs_of(tok):
    tok = tok.strip()
    if tok in ("vcc",): return {("s", 106), ("s", 107)}
    if tok == "vcc_lo": return {("s", 106)}
    if tok == "vcc_hi": return {("s", 107)}
    if tok == "exec": return {("s", 126), ("s", 127)}
    if tok == "m0": return {("s", 124)}
    m = _REG.match(tok)
    if not m: return set()
    k = m.group(3)
    if m.group(4) is not None:
        return {(k, int(m.group(4)))}
    return {(k, i) for i in range(int(m.group(5)), int(m.group(6)) + 1)}

def split_ops(s):
    out, depth, cur = [], 0, ""
    for ch in s:
        if ch in "[(": depth += 1
        if ch in "])": depth -= 1
        if ch == "," and depth == 0:
            out.append(cur.strip()); cur = ""
        else:
            cur += ch
    if cur.strip(): out.append(cur.strip())
    return out

TRANS = ("v_exp_f32", "v_log_f32", "v_rcp_f32", "v_rsq_f32", "v_sqrt_f32", "v_sin_f32", "v_cos_f32", "v_rcp_iflag_f32")

class Ins:
    def __init__(self, text):
        self.text = text
        t = text.split(";")[0].strip()
        parts = t.split(None, 1)
        self.mn = parts[0]
        ops = split_ops(parts[1]) if len(parts) > 1 else []
        self.mods = ""
        ops2 = []
        for o in ops:
            pieces = o.split()
            ops2.append(pieces[0])
            if len(pieces) > 1: self.mods += " " + " ".join(pieces[1:])
        ops = ops2
        self.ops = ops
        mn = re.sub(r"_e(32|64)$", "", self.mn)
        self.base = mn
        self.w, self.r = set(), set()
        self.kind = "other"
        self.passes = 0
        self.srcc = set(); self.srcab = set()
        self.ws = 1
        if mn == "s_nop":
            self.kind = "nop"; self.ws = int(ops[0], 0) + 1
        elif mn.startswith("v_mfma"):
            self.kind = "mfma"
            self.passes = 8 if "32x32" in mn else 4
            self.w = regs_of(ops[0]); self.srcab = regs_of(ops[1]) | regs_of(ops[2]); self.srcc = regs_of(ops[3])
            self.r = self.srcab | self.srcc
        elif mn.startswith("v_cmp"):
            self.kind = "valu"; self.w = regs_of(ops[0])
            if mn.startswith("v_cmpx"): self.w |= regs_of("exec")
            for o in ops[1:]: self.r |= regs_of(o)
        elif mn in ("v_readfirstlane_b32", "v_readlane_b32"):
            self.kind = "valu"; self.sub = "readlane"; self.w = regs_of(ops[0])
            for o in ops[1:]: self.r |= regs_of(o)
        elif mn.startswith("v_permlane") and "swap" in mn:
            self.kind = "valu"; self.w = regs_of(ops[0]) | regs_of(ops[1]); self.r = set(self.w)
        elif mn.startswith("v_"):
            self.kind = "valu"
            self.w = regs_of(ops[0])
            rest = ops[1:]
            if mn in ("v_add_co_u32", "v_sub_co_u32", "v_addc_co_u32", "v_subb_co_u32", "v_mad_u64_u32", "v_div_scale_f32"):
                self.w |= regs_of(ops[1]); rest = ops[2:]
            for o in rest: self.r |= regs_of(o)
            if mn in ("v_fmac_f32", "v_pk_fmac_f16", "v_dot2c_f32_bf16", "v_writelane_b32") : self.r |= regs_of(ops[0])
            if mn == "v_cndmask_b32" and len(ops) == 3: self.r |= regs_of("vcc")
        elif mn.startswith("ds_"):
            self.kind = "ds"
            if mn.startswith("ds_read") or mn.startswith("ds_bpermute") or mn.startswith("ds_permute") or mn.startswith("ds_swizzle"):
                self.w = regs_of(ops[0])
                for o in ops[1:]: self.r |= regs_of(o)
            else:
                for o in ops: self.r |= regs_of(o)
        elif mn.startswith("buffer_") or mn.startswith("global_"):
            self.kind = "vmem"
            islds = " lds" in (" " + self.mods) or "_lds_" in mn
            self.islds = islds
            if mn.startswith("buffer_load") and not islds:
                self.w = regs_of(ops[0])
                for o in ops[1:]: self.r |= regs_of(o)
                if "d16" in mn: self.r |= regs_of(ops[0])
            elif mn.startswith("global_load") and not islds:
                self.w = regs_of(ops[0])
                for o in ops[1:]: self.r |= regs_of(o)
            else:
                for o in ops: self.r |= regs_of(o)
                if "atomic" in mn and "sc0" in self.mods: self.w = regs_of(ops[0])
            if islds: self.r |= regs_of("m0")
            self.widestore = ("store" in mn and ("x3" in mn or "x4" in mn))
            if self.widestore:
                self.sdata = regs_of(ops[0]) if mn.startswith("buffer") else regs_of(ops[1])
        elif mn.startswith("s_"):
            self.kind = "salu"
            if mn.startswith("s_cmp") or mn.startswith("s_cbranch") or mn in ("s_branch", "s_waitcnt", "s_barrier", "s_endpgm", "s_setprio", "s_sleep"):
                for o in ops: self.r |= regs_of(o)
            else:
                if ops: self.w = regs_of(ops[0])
                for o in ops[1:]: self.r |= regs_of(o)
                if "saveexec" in mn: self.w |= regs_of("exec")
        self.trans = mn in TRANS
        self.dpp = any(x in self.mods for x in ("row_", "quad_perm", "wave_", "row_bcast", "row_mirror", "row_half"))

def need(prod, cons):
    n = 0
    vw = {x for x in prod.w if x[0] in "va"}
    sw = {x for x in prod.w if x[0] == "s"}
    if prod.kind == "valu":
        if cons.kind == "mfma" and vw & cons.r: n = max(n, 2)
        if cons.kind == "mfma" and sw & regs_of("exec"): n = max(n, 4)
        if prod.trans and cons.kind == "valu" and not cons.trans and vw & (cons.r | cons.w): n = max(n, 1)
        if prod.trans and cons.kind in ("ds", "vmem") and vw & cons.r: n = max(n, 1)
        if cons.kind == "valu" and sw & cons.r: n = max(n, 4 if cons.base in ("v_readlane_b32", "v_writelane_b32") else 2)
        if cons.kind == "vmem" and sw & cons.r: n = max(n, 5)
        if cons.kind == "salu" and sw & cons.r: n = max(n, 1)
        if cons.kind == "valu" and cons.base in ("v_readfirstlane_b32", "v_readlane_b32") and vw & cons.r: n = max(n, 1)
        if cons.kind == "valu" and (cons.dpp or cons.base.startswith("v_permlane")) and vw & cons.r: n = max(n, 2)
        if cons.kind == "valu" and (cons.dpp or cons.base.startswith("v_permlane") or cons.base in ("v_readfirstlane_b32", "v_readlane_b32")) and sw & regs_of("exec"): n = max(n, 5)
        if ("op_sel" in prod.mods or "sdwa" in prod.mn) and cons.kind == "valu" and vw & (cons.r | cons.w): n = max(n, 1)
    if prod.kind == "mfma":
        P = prod.passes
        big = {8: 12, 4: 8}[P]
        if cons.kind == "mfma":
            if prod.w & cons.srcab: n = max(n, big)
            if prod.w & cons.srcc:
                if not (cons.srcc == prod.w and cons.passes == P): n = max(n, {8: 10, 4: 6}[P])
            elif prod.w & cons.w:
                n = max(n, big)
        elif cons.kind in ("valu", "ds", "vmem"):
            if prod.w & (cons.r | cons.w): n = max(n, big)
            if cons.kind == "valu" and prod.srcc & cons.w: n = max(n, {8: 7, 4: 3}[P])
    if prod.kind == "salu":
        if cons.kind == "vmem" and getattr(cons, "islds", False) and sw & regs_of("m0"): n = max(n, 1)
    if prod.kind == "vmem" and getattr(prod, "widestore", False):
        if prod.sdata & cons.w: n = max(n, 2 if cons.kind in ("valu", "mfma") else 1)
    return n

class Asm:
    def __init__(self, pad=True):
        self.lines = []
        self.hist = []
        self.lbl = 0
        self.pad = pad
        self.nops = 0
    def _emit(self, l):
        ins = Ins(l)
        if self.pad and ins.kind != "nop":
            dist = 0; req = 0
            for p in reversed(self.hist):
                k = need(p, ins)
                if k > dist: req = max(req, k - dist)
                dist += p.ws
                if dist > 24: break
            while req > 0:
                k = min(req, 16)
                nop = Ins(f"s_nop {k-1}")
                self.lines.append(f"    s_nop {k-1}")
                self.hist.append(nop); self.nops += k
                req -= k
        self.lines.append("    " + l)
        self.hist.append(ins)
        if len(self.hist) > 64: self.hist = self.hist[-40:]
    def __call__(self, s):
        for l in s.strip("\n").split("\n"):
            l = l.strip()
            if not l: continue
            if l.startswith(";") or l.startswith("."):
                self.lines.append("    " + l)
            elif l.endswith(":"):
                self.lines.append(l)
            else:
                self._emit(l)
    def label(self, name):
        self.lines.append(name + ":")
    def newlabel(self, p="L"):
        self.lbl += 1
        return f"{p}_{self.lbl}"
    def comment(self, s):
        self.lines.append("    ; " + s)
    def text(self):
        return "\n".join(self.lines) + "\n"

HEADER = """; Kernarg layout for this problem (88 bytes, ptrs only, base s[0:1]):
"""

def kernel_file(kernels, launches):
    out = HEADER
    if len(launches) == 1 and launches[0][0] == NAME + "_kernel":
        l, g, b, lds = launches[0]
        out += f"; @launch grid=({g},1,1) block=({b},1,1) lds={lds}\n"
    else:
        for l, g, b, lds in launches:
            out += f"; @launch kernel={l} grid=({g},1,1) block=({b},1,1) lds={lds}\n"
    out += '.amdgcn_target "amdgcn-amd-amdhsa--gfx950"\n.text\n'
    for label, body, nv, acc, ns in kernels:
        out += f".globl {label}\n.p2align 8\n.type {label},@function\n{label}:\n"
        out += body
        out += "    s_endpgm\n"
    out += '.section .rodata,"a"\n'
    for label, body, nv, acc, ns in kernels:
        out += f""".p2align 6
.amdhsa_kernel {label}
  .amdhsa_next_free_vgpr {nv}
  .amdhsa_next_free_sgpr {ns}
  .amdhsa_accum_offset {acc}
  .amdhsa_group_segment_fixed_size 0
  .amdhsa_kernarg_size 88
  .amdhsa_user_sgpr_count 2
  .amdhsa_user_sgpr_kernarg_segment_ptr 1
  .amdhsa_system_sgpr_workgroup_id_x 1
.end_amdhsa_kernel
"""
    return out
```

```python
import sys
from asmlib import *

PART = 0
REC = 2176
PHIQ = 4 << 20
OFR = 16 << 20
STAMP = 64 << 20
LOG2E = 0x3fb8aa3b
NLOG2E = 0xbfb8aa3b

def vr(b, n): return f"v[{b}:{b+n-1}]"

def decode(a, endlabel):
    a(f"""
    s_cmp_ge_u32 s2, 256
    s_cbranch_scc1 {endlabel}
    s_and_b32 s3, s2, 7
    s_lshr_b32 s4, s2, 3
    s_lshr_b32 s5, s3, 2
    s_lshl_b32 s8, s5, 5
    s_load_dwordx8 s[12:19], s[0:1], s8
    s_load_dwordx4 s[40:43], s[0:1], 64
    s_load_dwordx2 s[44:45], s[0:1], 80
    v_lshrrev_b32 v1, 6, v0
    v_and_b32 v2, 63, v0
    v_readfirstlane_b32 s9, v1
    s_and_b32 s6, s4, 7
    s_lshr_b32 s7, s4, 3
    s_lshl_b32 s66, s7, 1
    s_add_u32 s66, s66, s6
    s_and_b32 s8, s3, 1
    s_lshl_b32 s8, s8, 3
    s_add_u32 s6, s6, s8
    s_lshr_b32 s8, s3, 1
    s_and_b32 s8, s8, 1
    s_lshl_b32 s8, s8, 2
    s_add_u32 s7, s7, s8
    s_and_b32 s10, s9, 1
    s_lshr_b32 s11, s9, 1
    """)

def srd(a, d, lo, nbytes):
    a(f"s_mov_b32 s{d}, s{lo}\ns_mov_b32 s{d+1}, s{lo+1}\ns_mov_b32 s{d+2}, {nbytes:#x}\ns_mov_b32 s{d+3}, 0x20000")

def softmax(a, P, O, T, sc, snc):
    m1, m2 = T, T + 1
    a(f"v_max3_f32 v{m1}, v{P}, v{P+1}, v{P+2}")
    a(f"v_max3_f32 v{m2}, v{P+3}, v{P+4}, v{P+5}")
    a(f"v_max3_f32 v{m1}, v{m1}, v{P+6}, v{P+7}")
    a(f"v_max3_f32 v{m2}, v{m2}, v{P+8}, v{P+9}")
    a(f"v_max3_f32 v{m1}, v{m1}, v{P+10}, v{P+11}")
    a(f"v_max3_f32 v{m2}, v{m2}, v{P+12}, v{P+13}")
    a(f"v_max3_f32 v{m1}, v{m1}, v{P+14}, v{P+15}")
    a(f"v_max_f32 v{m1}, v{m1}, v{m2}")
    a(f"v_mul_f32 v{m1}, s{snc}, v{m1}")
    for r in range(0, 16, 2):
        a(f"v_pk_fma_f32 {vr(P+r,2)}, {vr(P+r,2)}, s[{sc}:{sc+1}], {vr(m1,2)} op_sel_hi:[1,1,0]")
    for r in range(16):
        a(f"v_exp_f32 v{P+r}, v{P+r}")
    s0 = T; s1 = T + 2
    a(f"v_pk_add_f32 {vr(s0,2)}, {vr(P,2)}, {vr(P+2,2)}")
    a(f"v_pk_add_f32 {vr(s1,2)}, {vr(P+4,2)}, {vr(P+6,2)}")
    a(f"v_pk_add_f32 {vr(s0,2)}, {vr(s0,2)}, {vr(P+8,2)}")
    a(f"v_pk_add_f32 {vr(s1,2)}, {vr(s1,2)}, {vr(P+10,2)}")
    a(f"v_pk_add_f32 {vr(s0,2)}, {vr(s0,2)}, {vr(P+12,2)}")
    a(f"v_pk_add_f32 {vr(s1,2)}, {vr(s1,2)}, {vr(P+14,2)}")
    a(f"v_pk_add_f32 {vr(s0,2)}, {vr(s0,2)}, {vr(s1,2)}")
    a(f"v_add_f32 v{s0}, v{s0}, v{s0+1}")
    a(f"v_rcp_f32 v{s0}, v{s0}")
    for r in range(0, 16, 2):
        a(f"v_pk_mul_f32 {vr(P+r,2)}, {vr(P+r,2)}, {vr(s0,2)} op_sel_hi:[1,0]")
    for r in range(0, 16, 2):
        a(f"v_cvt_pk_bf16_f32 v{O+r//2}, v{P+r}, v{P+r+1}")

def k1():
    a = Asm()
    decode(a, "K1_end")
    XV = 4
    WV = 8
    a("v_lshrrev_b32 v3, 3, v2")
    a("v_and_b32 v9, 7, v2")
    a("v_lshrrev_b32 v10, 1, v3")
    for i in range(4):
        a(f"v_xor_b32 v11, v9, v10")
        if i & 1: a("v_xor_b32 v11, 4, v11")
        a(f"v_lshlrev_b32 v11, 4, v11")
        a(f"v_lshl_add_u32 v{XV+i}, v3, 10, v11")
        if i: a(f"v_add_u32 v{XV+i}, {i*8192 - i*1024}, v{XV+i}")
    a("v_and_b32 v11, 1, v10")
    a("v_lshlrev_b32 v11, 2, v11")
    a("v_xor_b32 v11, v9, v11")
    a("v_lshlrev_b32 v11, 4, v11")
    a("v_mul_u32_u24 v12, 3072, v3")
    a(f"v_add_u32 v{WV}, v11, v12")
    a("s_lshl_b32 s36, s6, 17")
    a("s_lshl_b32 s8, s9, 15")
    a("s_add_u32 s36, s36, s8")
    a("s_lshl_b32 s37, s7, 7")
    a("s_mul_i32 s8, s9, 49152")
    a("s_add_u32 s37, s37, s8")
    a("s_mul_i32 s38, s9, 10240")
    XA = 160
    WA = 168
    a("v_and_b32 v3, 31, v2")
    a("v_lshrrev_b32 v9, 5, v2")
    a("v_bfe_u32 v10, v2, 1, 3")
    a("s_mul_i32 s8, s10, 20480")
    for ks in range(4):
        a(f"v_or_b32 v11, {2*ks}, v9")
        a("v_xor_b32 v11, v11, v10")
        a("v_lshlrev_b32 v11, 4, v11")
        a("v_lshl_add_u32 v11, v3, 7, v11")
        a(f"v_add_u32 v{XA+ks}, s8, v11")
        a(f"v_add_u32 v{XA+4+ks}, 81920, v{XA+ks}")
    a("v_bfe_u32 v10, v2, 4, 1")
    a("v_xor_b32 v10, s10, v10")
    a("v_lshlrev_b32 v10, 1, v10")
    a("v_bfe_u32 v11, v2, 1, 1")
    a("v_or_b32 v10, v10, v11")
    a("s_lshl_b32 s8, s11, 2")
    a("v_or_b32 v10, s8, v10")
    a("v_bfe_u32 v11, v2, 3, 1")
    a("v_lshlrev_b32 v11, 2, v11")
    a("v_xor_b32 v10, v10, v11")
    a("v_lshlrev_b32 v10, 4, v10")
    a("v_and_b32 v11, 1, v2")
    a("v_lshl_add_u32 v10, v11, 3, v10")
    a("v_bfe_u32 v11, v2, 2, 2")
    a("v_lshl_add_u32 v10, v11, 7, v10")
    a("v_mul_u32_u24 v11, 3072, v9")
    a("v_add_u32 v10, v10, v11")
    for s in range(4):
        a(f"v_add_u32 v{WA+s}, {4096 + s*40960}, v10")
    a("v_and_b32 v10, 3, v2")
    a("v_bfe_u32 v11, v2, 3, 2")
    a("v_lshl_add_u32 v10, v11, 2, v10")
    a("v_lshlrev_b32 v10, 1, v10")
    a("v_lshl_add_u32 v13, v9, 7, v10")
    a("s_lshl_b32 s46, s7, 2")
    a("s_lshl_b32 s8, s11, 1")
    a("s_add_u32 s46, s46, s8")
    a("s_add_u32 s47, s46, s10")
    a("s_xor_b32 s8, s10, 1")
    a("s_add_u32 s48, s46, s8")
    a("s_lshl_b32 s49, s47, 9")
    a("s_lshl_b32 s50, s48, 9")
    a("s_waitcnt lgkmcnt(0)")
    srd(a, 20, 12, 0x200000)
    srd(a, 24, 14, 0x180000)
    srd(a, 28, 44, 0x10000000)
    srd(a, 32, 16, 0x4000)

    def dma_chunk(t):
        slot = t % 4
        a(f"s_add_u32 s39, s66, {t}")
        a("s_and_b32 s39, s39, 7")
        a("s_lshl_b32 s51, s39, 7")
        a("s_add_u32 s51, s51, s36")
        a("s_mul_i32 s52, s39, 196608")
        a("s_add_u32 s52, s52, s37")
        a("s_add_u32 s53, s52, 24576")
        a(f"s_add_u32 m0, s38, {slot*40960}")
        for i in range(4):
            a(f"buffer_load_dwordx4 v{XV+i}, s[20:23], s51 offen offset:{i*1024} lds")
        a(f"s_add_u32 m0, s38, {slot*40960+4096}")
        for e in range(3):
            a(f"buffer_load_dwordx4 v{WV}, s[24:27], s52 offen offset:{e*1024} lds")
        a(f"s_add_u32 m0, s38, {slot*40960+7168}")
        for e in range(3):
            a(f"buffer_load_dwordx4 v{WV}, s[24:27], s53 offen offset:{e*1024} lds")
    dma_chunk(0)
    WP = 176
    for hh in range(2):
        for j in range(8):
            a(f"buffer_load_ushort v{WP+hh*8+j}, v13, s[32:35], s{49+hh} offen offset:{((j&3)+8*(j>>2))*32}")
    for t in range(1, 4): dma_chunk(t)
    ACC = 64
    Q = [64, 80]; K = [96, 112]; V = [128, 144]
    FS = [16, 36]
    def reads(t, ks, fs):
        slot = t % 4
        xa = XA + 4 * (slot // 2) + ks
        xo = (slot % 2) * 40960
        r = [f"ds_read_b128 {vr(fs,4)}, v{xa} offset:{xo}",
             f"ds_read_b128 {vr(fs+4,4)}, v{xa} offset:{xo+10240}"]
        for seg in range(3):
            for half in range(2):
                r.append(f"ds_read_b64_tr_b16 {vr(fs+8+seg*4+half*2,2)}, v{WA+slot} offset:{ks*10240+seg*1024+half*512}")
        return r
    def mfmas(fs, first):
        x0, x1, wq, wk, wv = vr(fs,4), vr(fs+4,4), vr(fs+8,4), vr(fs+12,4), vr(fs+16,4)
        def c(b): return "0" if first else vr(b,16)
        return [f"v_mfma_f32_32x32x16_bf16 {vr(Q[0],16)}, {wq}, {x0}, {c(Q[0])}",
                f"v_mfma_f32_32x32x16_bf16 {vr(Q[1],16)}, {wq}, {x1}, {c(Q[1])}",
                f"v_mfma_f32_32x32x16_bf16 {vr(K[0],16)}, {wk}, {x0}, {c(K[0])}",
                f"v_mfma_f32_32x32x16_bf16 {vr(K[1],16)}, {wk}, {x1}, {c(K[1])}",
                f"v_mfma_f32_32x32x16_bf16 {vr(V[0],16)}, {x0}, {wv}, {c(V[0])}",
                f"v_mfma_f32_32x32x16_bf16 {vr(V[1],16)}, {x1}, {wv}, {c(V[1])}"]
    a("s_waitcnt vmcnt(46)")
    a("s_barrier")
    for r in reads(0, 0, FS[0]): a(r)
    a("s_waitcnt lgkmcnt(0)")
    step = 0
    for t in range(8):
        for ks in range(4):
            cur = FS[step % 2]; nxt = FS[(step + 1) % 2]
            m = mfmas(cur, step == 0)
            if ks < 3:
                rd = reads(t, ks + 1, nxt)
            elif t < 7:
                n = 10 * (min(t + 3, 7) - (t + 1))
                a(f"s_waitcnt vmcnt({n})")
                a("s_barrier")
                rd = reads(t + 1, 0, nxt)
            else:
                rd = []
            for i in range(6):
                a(m[i])
                for r in rd[2*i:2*i+2]: a(r)
                if ks == 3 and t + 4 <= 7 and i == 4:
                    dma_chunk(t + 4)
            a("s_waitcnt lgkmcnt(0)")
            step += 1
    a("s_barrier")
    WPH = 56
    for hh in range(2):
        for j in range(0, 8, 2):
            a(f"v_lshl_or_b32 v{WPH+hh*4+j//2}, v{WP+hh*8+j+1}, 16, v{WP+hh*8+j}")
    a("v_bfe_u32 v10, v2, 2, 1")
    a("v_mul_u32_u24 v10, 0x8000, v10")
    a("v_lshl_or_b32 v10, v10, 16, v10")
    for i in range(8):
        a(f"v_xor_b32 v{WPH+i}, v10, v{WPH+i}")
    a(f"s_mov_b32 s54, {LOG2E:#x}\ns_mov_b32 s55, {LOG2E:#x}\ns_mov_b32 s56, {NLOG2E:#x}\ns_mov_b32 s57, 0x3f803f80")
    OP = 16
    def cvt8(dst, src):
        for j in range(0, 8, 2):
            a(f"v_cvt_pk_bf16_f32 v{dst+j//2}, v{src+j}, v{src+j+1}")
    for sb in range(2):
        for hh in range(2):
            cvt8(OP + (sb*2+hh)*4, K[sb] + 8*hh)
    PT = [96, 112, 192, 208]
    for sb in range(2):
        for hh in range(2):
            a(f"v_mfma_f32_32x32x16_bf16 {vr(PT[sb*2+hh],16)}, {vr(WPH+hh*4,4)}, {vr(OP+(sb*2+hh)*4,4)}, 0")
    VO = 32
    for sb in range(2):
        cvt8(VO + sb*8, V[sb]); cvt8(VO + sb*8 + 4, V[sb] + 8)
    a("v_and_b32 v10, 16, v2")
    a("v_cmp_eq_u32 vcc, 0, v10")
    a("v_mov_b32 v11, s57")
    for i in range(16):
        a(f"v_cndmask_b32 v{224+i}, v11, v{VO+i}, vcc")
    for i in range(16):
        a(f"v_cndmask_b32 v{240+i}, v{VO+i}, v11, vcc")
    a("s_lshl_b32 s8, s9, 13")
    a("v_and_b32 v10, 31, v2")
    a("v_lshlrev_b32 v10, 6, v10")
    a("v_lshl_add_u32 v10, v9, 5, v10")
    a("v_add_u32 v14, s8, v10")
    a("v_bfe_u32 v10, v2, 2, 2")
    a("v_lshl_add_u32 v10, v9, 2, v10")
    a("v_lshlrev_b32 v10, 6, v10")
    a("v_and_b32 v11, 1, v2")
    a("v_lshl_add_u32 v10, v11, 5, v10")
    a("v_bfe_u32 v11, v2, 4, 1")
    a("v_lshl_add_u32 v10, v11, 4, v10")
    a("v_bfe_u32 v11, v2, 1, 1")
    a("v_lshl_add_u32 v10, v11, 3, v10")
    a("v_add_u32 v15, s8, v10")
    PH = 128
    for tile in range(4):
        softmax(a, PT[tile], PH + tile*8, 48, 54, 56)
        a(f"ds_write_b128 v14, {vr(PH+tile*8,4)} offset:{tile*2048}")
        a(f"ds_write_b128 v14, {vr(PH+tile*8+4,4)} offset:{tile*2048+16}")
    a("s_waitcnt lgkmcnt(0)")
    AT = 96
    for tile in range(4):
        for t in range(2):
            for half in range(2):
                a(f"ds_read_b64_tr_b16 {vr(AT+tile*8+t*4+half*2,2)}, v15 offset:{tile*2048+t*1024+half*512}")
    for sb in range(2):
        for hh in range(2):
            cvt8(OP + (sb*2+hh)*4, Q[sb] + 8*hh)
    a("s_waitcnt lgkmcnt(0)")
    KV = [192, 208]
    for sb in range(2):
        for t in range(2):
            for hh in range(2):
                c = "0" if (sb == 0 and t == 0) else vr(KV[hh],16)
                a(f"v_mfma_f32_32x32x16_bf16 {vr(KV[hh],16)}, {vr(AT+(sb*2+hh)*8+t*4,4)}, {vr(224+hh*16+sb*8+t*4,4)}, {c}")
    PQ = [64, 80, 128, 144]
    for sb in range(2):
        for hh in range(2):
            a(f"v_mfma_f32_32x32x16_bf16 {vr(PQ[sb*2+hh],16)}, {vr(WPH+hh*4,4)}, {vr(OP+(sb*2+hh)*4,4)}, 0")
    a("s_xor_b32 s8, s9, 1")
    a("s_lshl_b32 s8, s8, 12")
    a("v_xor_b32 v10, 16, v2")
    a("v_lshlrev_b32 v10, 4, v10")
    a("v_add_u32 v10, s8, v10")
    for q in range(4):
        a(f"ds_write_b128 v10, {vr(KV[1]+q*4,4)} offset:{32768+q*1024}")
    a("s_lshl_b32 s8, s9, 12")
    a("v_lshlrev_b32 v10, 4, v2")
    a("v_add_u32 v10, s8, v10")
    a("s_waitcnt lgkmcnt(0)")
    a("s_barrier")
    for q in range(4):
        a(f"ds_read_b128 {vr(KV[1]+q*4,4)}, v10 offset:{32768+q*1024}")
    a("v_and_b32 v10, 15, v2")
    a("v_lshl_add_u32 v10, v9, 4, v10")
    a("v_add_u32 v11, 32, v9")
    a("v_and_b32 v12, 16, v2")
    a("v_cmp_eq_u32 vcc, 0, v12")
    a("v_cndmask_b32 v10, v11, v10, vcc")
    a("v_lshlrev_b32 v10, 4, v10")
    a("s_lshl_b32 s8, s5, 5")
    a("s_add_u32 s8, s8, s47")
    a("s_lshl_b32 s8, s8, 4")
    a("s_add_u32 s8, s8, s6")
    a(f"s_mul_i32 s58, s8, {REC}")
    a("s_waitcnt lgkmcnt(0)")
    for r in range(0, 16, 2):
        a(f"v_pk_add_f32 {vr(KV[0]+r,2)}, {vr(KV[0]+r,2)}, {vr(KV[1]+r,2)}")
    for q in range(4):
        a(f"buffer_store_dwordx4 {vr(KV[0]+q*4,4)}, v10, s[28:31], s58 offen offset:{q*544}")
    a("v_lshlrev_b32 v11, 4, v2")
    for sb in range(2):
        for hh in range(2):
            tile = sb*2 + hh
            O = 96 + tile*8
            softmax(a, PQ[tile], O, 48, 54, 56)
            a("s_lshl_b32 s8, s5, 6")
            a("s_lshl_b32 s59, s6, 2")
            a("s_add_u32 s8, s8, s59")
            a("s_lshl_b32 s59, s10, 1")
            a("s_add_u32 s8, s8, s59")
            a(f"s_add_u32 s8, s8, {sb}")
            a("s_lshl_b32 s8, s8, 5")
            a(f"s_add_u32 s8, s8, s{47+hh}")
            a("s_lshl_b32 s8, s8, 11")
            a(f"s_add_u32 s8, s8, {PHIQ:#x}")
            a(f"buffer_store_dwordx4 {vr(O,4)}, v11, s[28:31], s8 offen")
            a(f"buffer_store_dwordx4 {vr(O+4,4)}, v11, s[28:31], s8 offen offset:1024")
    a.label("K1_end")
    return a

def k2():
    a = Asm()
    decode(a, "K2_end")
    a("v_lshrrev_b32 v9, 5, v2")
    a("s_lshl_b32 s46, s7, 2")
    a("s_lshl_b32 s8, s11, 1")
    a("s_add_u32 s46, s46, s8")
    a("s_add_u32 s47, s46, s10")
    a("s_xor_b32 s8, s10, 1")
    a("s_add_u32 s48, s46, s8")
    a("v_and_b32 v10, 15, v2")
    a("v_lshl_add_u32 v10, v9, 4, v10")
    a("v_add_u32 v11, 32, v9")
    a("v_and_b32 v12, 16, v2")
    a("v_cmp_eq_u32 vcc, 0, v12")
    a("v_cndmask_b32 v10, v11, v10, vcc")
    a("v_lshlrev_b32 v10, 4, v10")
    a("v_lshlrev_b32 v11, 4, v2")
    a("s_lshl_b32 s8, s5, 5")
    a("s_add_u32 s8, s8, s47")
    a(f"s_mul_i32 s58, s8, {REC*16}")
    a("s_waitcnt lgkmcnt(0)")
    srd(a, 28, 44, 0x10000000)
    for sb in range(2):
        for hh in range(2):
            tile = sb*2 + hh
            a("s_lshl_b32 s8, s5, 6")
            a("s_lshl_b32 s59, s6, 2")
            a("s_add_u32 s8, s8, s59")
            a("s_lshl_b32 s59, s10, 1")
            a("s_add_u32 s8, s8, s59")
            a(f"s_add_u32 s8, s8, {sb}")
            a("s_lshl_b32 s8, s8, 5")
            a(f"s_add_u32 s8, s8, s{47+hh}")
            a(f"s_lshl_b32 s{60+tile}, s8, 10")
            a(f"s_add_u32 s{60+tile}, s{60+tile}, {OFR:#x}")
            a("s_lshl_b32 s8, s8, 11")
            a(f"s_add_u32 s8, s8, {PHIQ:#x}")
            a(f"buffer_load_dwordx4 {vr(16+tile*8,4)}, v11, s[28:31], s8 offen")
            a(f"buffer_load_dwordx4 {vr(16+tile*8+4,4)}, v11, s[28:31], s8 offen offset:1024")
    for b in range(2):
        for i in range(8):
            a(f"s_add_u32 s8, s58, {(b*8+i)*REC}")
            for q in range(4):
                a(f"buffer_load_dwordx4 {vr(64+i*16+q*4,4)}, v10, s[28:31], s8 offen offset:{q*544}")
        a("s_waitcnt vmcnt(0)")
        for i in range(8):
            for r in range(0, 16, 2):
                if b == 0 and i == 0:
                    continue
                src = vr(64+r,2) if (b == 0 and i == 1) else vr(48+r,2)
                a(f"v_pk_add_f32 {vr(48+r,2)}, {src}, {vr(64+i*16+r,2)}")
    KO = [64, 72]
    for r in range(0, 16, 2):
        a(f"v_cvt_pk_bf16_f32 v{KO[0]+r//2}, v{48+r}, v{48+r+1}")
    a("s_xor_b32 s8, s9, 1")
    a("s_lshl_b32 s8, s8, 11")
    a("v_add_u32 v12, s8, v11")
    a(f"ds_write_b128 v12, {vr(KO[0],4)}")
    a(f"ds_write_b128 v12, {vr(KO[0]+4,4)} offset:1024")
    a("s_lshl_b32 s8, s9, 11")
    a("v_add_u32 v12, s8, v11")
    a("s_waitcnt lgkmcnt(0)")
    a("s_barrier")
    a(f"ds_read_b128 {vr(KO[1],4)}, v12")
    a(f"ds_read_b128 {vr(KO[1]+4,4)}, v12 offset:1024")
    a("s_waitcnt lgkmcnt(0)")
    N = [96, 112, 128, 144]
    for t in range(2):
        for tile in range(4):
            hh = tile & 1
            c = "0" if t == 0 else vr(N[tile],16)
            a(f"v_mfma_f32_32x32x16_bf16 {vr(N[tile],16)}, {vr(KO[hh]+t*4,4)}, {vr(16+tile*8+t*4,4)}, {c}")
    for tile in range(4):
        n = N[tile]
        a(f"v_add_f32 v{n+8}, 0x358637bd, v{n+8}")
        a(f"v_rcp_f32 v{n+8}, v{n+8}")
        for r in range(0, 8, 2):
            a(f"v_pk_mul_f32 {vr(n+r,2)}, {vr(n+r,2)}, {vr(n+8,2)} op_sel_hi:[1,0]")
        for r in range(0, 8, 2):
            a(f"v_cvt_pk_bf16_f32 v{n+12+r//2}, v{n+r}, v{n+r+1}")
        a(f"buffer_store_dwordx4 {vr(n+12,4)}, v11, s[28:31], s{60+tile} offen")
    a.label("K2_end")
    return a

def k3():
    a = Asm()
    decode(a, "K3_end")
    a("v_lshrrev_b32 v9, 5, v2")
    a("v_lshrrev_b32 v3, 3, v2")
    a("v_and_b32 v10, 7, v2")
    a("v_bfe_u32 v11, v2, 4, 1")
    a("v_lshlrev_b32 v11, 1, v11")
    a("v_xor_b32 v10, v10, v11")
    a("v_lshlrev_b32 v10, 4, v10")
    a("v_lshl_add_u32 v10, v3, 10, v10")
    for i in range(4):
        a(f"v_add_u32 v{4+i}, {i*8192-i*1024}, v10")
    a("s_lshl_b32 s36, s7, 7")
    a("s_lshl_b32 s8, s9, 17")
    a("s_add_u32 s36, s36, s8")
    a("s_lshl_b32 s38, s9, 14")
    a("s_lshl_b32 s8, s5, 6")
    a("s_lshl_b32 s59, s6, 2")
    a("s_add_u32 s8, s8, s59")
    a("s_add_u32 s8, s8, s9")
    a("s_lshl_b32 s37, s8, 15")
    a(f"s_add_u32 s37, s37, {OFR:#x}")
    a("v_lshlrev_b32 v11, 4, v2")
    a("v_bfe_u32 v12, v2, 2, 2")
    a("v_lshl_add_u32 v12, v9, 2, v12")
    a("v_lshlrev_b32 v12, 7, v12")
    a("v_bfe_u32 v13, v2, 1, 1")
    a("v_lshl_add_u32 v12, v13, 3, v12")
    a("v_and_b32 v13, 1, v2")
    a("v_lshlrev_b32 v13, 2, v13")
    a("v_bfe_u32 v14, v2, 4, 1")
    a("v_or_b32 v13, v13, v14")
    a("v_bfe_u32 v14, v2, 3, 1")
    a("v_lshlrev_b32 v14, 1, v14")
    a("v_xor_b32 v13, v13, v14")
    a("v_lshl_add_u32 v14, v13, 4, v12")
    a("v_xor_b32 v13, 2, v13")
    a("v_lshl_add_u32 v15, v13, 4, v12")
    a("v_and_b32 v12, 31, v2")
    a("v_lshlrev_b32 v12, 11, v12")
    a("v_lshl_add_u32 v12, v9, 6, v12")
    a("s_lshl_b32 s39, s6, 18")
    a("s_lshl_b32 s8, s9, 16")
    a("s_add_u32 s39, s39, s8")
    a("s_lshl_b32 s8, s5, 10")
    a("s_add_u32 s39, s39, s8")
    a("s_lshl_b32 s8, s7, 7")
    a("s_add_u32 s39, s39, s8")
    a("s_waitcnt lgkmcnt(0)")
    srd(a, 20, 18, 0x80000)
    srd(a, 24, 40, 0x400000)
    srd(a, 28, 44, 0x10000000)
    for g in range(4):
        a(f"s_add_u32 m0, s38, {g*4096}")
        a(f"s_add_u32 s8, s36, {g*32768}")
        for i in range(4):
            a(f"buffer_load_dwordx4 v{4+i}, s[20:23], s8 offen offset:{i*1024} lds")
    OF = 128
    for h in range(32):
        if h % 4 == 0:
            a(f"s_add_u32 s8, s37, {h*1024}")
        a(f"buffer_load_dwordx4 {vr(OF+h*4,4)}, v11, s[28:31], s8 offen offset:{(h%4)*1024}")
    a("s_waitcnt vmcnt(32)")
    a("s_barrier")
    D = [64, 80]
    FS = [16, 24, 32, 40]
    def reads(h, fs):
        r = []
        for t in range(2):
            for half in range(2):
                r.append(f"ds_read_b64_tr_b16 {vr(fs+t*4+half*2,2)}, v{14+t} offset:{h*2048+half*1024}")
        return r
    for h in range(3):
        for r in reads(h, FS[h]): a(r)
    for h in range(32):
        if h + 3 < 32:
            for r in reads(h + 3, FS[(h+3) % 4]): a(r)
        outstanding = min(3, 31 - h) * 4
        a(f"s_waitcnt vmcnt({31-h}) lgkmcnt({outstanding})")
        fs = FS[h % 4]
        for t in range(2):
            c = "0" if h == 0 else vr(D[t],16)
            a(f"v_mfma_f32_32x32x16_bf16 {vr(D[t],16)}, {vr(fs+t*4,4)}, {vr(OF+h*4,4)}, {c}")
    for t in range(2):
        for r in range(0, 16, 2):
            a(f"v_cvt_pk_bf16_f32 v{96+t*8+r//2}, v{D[t]+r}, v{D[t]+r+1}")
        a(f"buffer_store_dwordx4 {vr(96+t*8,4)}, v12, s[24:27], s39 offen offset:{t*32}")
        a(f"buffer_store_dwordx4 {vr(96+t*8+4,4)}, v12, s[24:27], s39 offen offset:{t*32+16}")
    a.label("K3_end")
    return a

if __name__ == "__main__":
    A, B, C = k1(), k2(), k3()
    print("nops", A.nops, B.nops, C.nops)
    txt = kernel_file([("k1_kernel", A.text(), 256, 256, 96), ("k2_kernel", B.text(), 192, 192, 96), ("k3_kernel", C.text(), 256, 256, 96)],
                      [("k1_kernel", 256, 256, 163840), ("k2_kernel", 256, 256, 8192), ("k3_kernel", 256, 256, 65536)])
    open(sys.argv[1] if len(sys.argv) > 1 else "v1.s", "w").write(txt)
```

```python
import re
NAME = "concat_heads__linear_kernel_hedgehog__linear_kernel_hedgehog__prompt"

_REG = re.compile(r'^(-|\|)?(abs\()?([vas])(?:(\d+)|\[(\d+):(\d+)\])')

def regs_of(tok):
    tok = tok.strip()
    if tok in ("vcc",): return {("s", 106), ("s", 107)}
    if tok == "vcc_lo": return {("s", 106)}
    if tok == "vcc_hi": return {("s", 107)}
    if tok == "exec": return {("s", 126), ("s", 127)}
    if tok == "m0": return {("s", 124)}
    m = _REG.match(tok)
    if not m: return set()
    k = m.group(3)
    if m.group(4) is not None:
        return {(k, int(m.group(4)))}
    return {(k, i) for i in range(int(m.group(5)), int(m.group(6)) + 1)}

def split_ops(s):
    out, depth, cur = [], 0, ""
    for ch in s:
        if ch in "[(": depth += 1
        if ch in "])": depth -= 1
        if ch == "," and depth == 0:
            out.append(cur.strip()); cur = ""
        else:
            cur += ch
    if cur.strip(): out.append(cur.strip())
    return out

TRANS = ("v_exp_f32", "v_log_f32", "v_rcp_f32", "v_rsq_f32", "v_sqrt_f32", "v_sin_f32", "v_cos_f32", "v_rcp_iflag_f32")

class Ins:
    def __init__(self, text):
        self.text = text
        t = text.split(";")[0].strip()
        parts = t.split(None, 1)
        self.mn = parts[0]
        ops = split_ops(parts[1]) if len(parts) > 1 else []
        self.mods = ""
        ops2 = []
        for o in ops:
            pieces = o.split()
            ops2.append(pieces[0])
            if len(pieces) > 1: self.mods += " " + " ".join(pieces[1:])
        ops = ops2
        self.ops = ops
        mn = re.sub(r"_e(32|64)$", "", self.mn)
        self.base = mn
        self.w, self.r = set(), set()
        self.kind = "other"
        self.passes = 0
        self.srcc = set(); self.srcab = set()
        self.ws = 1
        if mn == "s_nop":
            self.kind = "nop"; self.ws = int(ops[0], 0) + 1
        elif mn.startswith("v_mfma"):
            self.kind = "mfma"
            self.passes = 8 if "32x32" in mn else 4
            self.w = regs_of(ops[0]); self.srcab = regs_of(ops[1]) | regs_of(ops[2]); self.srcc = regs_of(ops[3])
            self.r = self.srcab | self.srcc
        elif mn.startswith("v_cmp"):
            self.kind = "valu"; self.w = regs_of(ops[0])
            if mn.startswith("v_cmpx"): self.w |= regs_of("exec")
            for o in ops[1:]: self.r |= regs_of(o)
        elif mn in ("v_readfirstlane_b32", "v_readlane_b32"):
            self.kind = "valu"; self.sub = "readlane"; self.w = regs_of(ops[0])
            for o in ops[1:]: self.r |= regs_of(o)
        elif mn.startswith("v_permlane") and "swap" in mn:
            self.kind = "valu"; self.w = regs_of(ops[0]) | regs_of(ops[1]); self.r = set(self.w)
        elif mn.startswith("v_"):
            self.kind = "valu"
            self.w = regs_of(ops[0])
            rest = ops[1:]
            if mn in ("v_add_co_u32", "v_sub_co_u32", "v_addc_co_u32", "v_subb_co_u32", "v_mad_u64_u32", "v_div_scale_f32"):
                self.w |= regs_of(ops[1]); rest = ops[2:]
            for o in rest: self.r |= regs_of(o)
            if mn in ("v_fmac_f32", "v_pk_fmac_f16", "v_dot2c_f32_bf16", "v_writelane_b32") : self.r |= regs_of(ops[0])
            if mn == "v_cndmask_b32" and len(ops) == 3: self.r |= regs_of("vcc")
        elif mn.startswith("ds_"):
            self.kind = "ds"
            if mn.startswith("ds_read") or mn.startswith("ds_bpermute") or mn.startswith("ds_permute") or mn.startswith("ds_swizzle"):
                self.w = regs_of(ops[0])
                for o in ops[1:]: self.r |= regs_of(o)
            else:
                for o in ops: self.r |= regs_of(o)
        elif mn.startswith("buffer_") or mn.startswith("global_"):
            self.kind = "vmem"
            islds = " lds" in (" " + self.mods) or "_lds_" in mn
            self.islds = islds
            if mn.startswith("buffer_load") and not islds:
                self.w = regs_of(ops[0])
                for o in ops[1:]: self.r |= regs_of(o)
                if "d16" in mn: self.r |= regs_of(ops[0])
            elif mn.startswith("global_load") and not islds:
                self.w = regs_of(ops[0])
                for o in ops[1:]: self.r |= regs_of(o)
            else:
                for o in ops: self.r |= regs_of(o)
                if "atomic" in mn and "sc0" in self.mods: self.w = regs_of(ops[0])
            if islds: self.r |= regs_of("m0")
            self.widestore = ("store" in mn and ("x3" in mn or "x4" in mn))
            if self.widestore:
                self.sdata = regs_of(ops[0]) if mn.startswith("buffer") else regs_of(ops[1])
        elif mn.startswith("s_"):
            self.kind = "salu"
            if mn.startswith("s_cmp") or mn.startswith("s_cbranch") or mn in ("s_branch", "s_waitcnt", "s_barrier", "s_endpgm", "s_setprio", "s_sleep"):
                for o in ops: self.r |= regs_of(o)
            else:
                if ops: self.w = regs_of(ops[0])
                for o in ops[1:]: self.r |= regs_of(o)
                if "saveexec" in mn: self.w |= regs_of("exec")
        self.trans = mn in TRANS
        self.dpp = any(x in self.mods for x in ("row_", "quad_perm", "wave_", "row_bcast", "row_mirror", "row_half"))

def need(prod, cons):
    n = 0
    vw = {x for x in prod.w if x[0] in "va"}
    sw = {x for x in prod.w if x[0] == "s"}
    if prod.kind == "valu":
        if cons.kind == "mfma" and vw & cons.r: n = max(n, 2)
        if cons.kind == "mfma" and sw & regs_of("exec"): n = max(n, 4)
        if prod.trans and cons.kind == "valu" and not cons.trans and vw & (cons.r | cons.w): n = max(n, 1)
        if prod.trans and cons.kind in ("ds", "vmem") and vw & cons.r: n = max(n, 1)
        if cons.kind == "valu" and sw & cons.r: n = max(n, 4 if cons.base in ("v_readlane_b32", "v_writelane_b32") else 2)
        if cons.kind == "vmem" and sw & cons.r: n = max(n, 5)
        if cons.kind == "salu" and sw & cons.r: n = max(n, 1)
        if cons.kind == "valu" and cons.base in ("v_readfirstlane_b32", "v_readlane_b32") and vw & cons.r: n = max(n, 1)
        if cons.kind == "valu" and (cons.dpp or cons.base.startswith("v_permlane")) and vw & cons.r: n = max(n, 2)
        if cons.kind == "valu" and (cons.dpp or cons.base.startswith("v_permlane") or cons.base in ("v_readfirstlane_b32", "v_readlane_b32")) and sw & regs_of("exec"): n = max(n, 5)
        if ("op_sel" in prod.mods or "sdwa" in prod.mn) and cons.kind == "valu" and vw & (cons.r | cons.w): n = max(n, 1)
    if prod.kind == "mfma":
        P = prod.passes
        big = {8: 12, 4: 8}[P]
        if cons.kind == "mfma":
            if prod.w & cons.srcab: n = max(n, big)
            if prod.w & cons.srcc:
                if not (cons.srcc == prod.w and cons.passes == P): n = max(n, {8: 10, 4: 6}[P])
            elif prod.w & cons.w:
                n = max(n, big)
        elif cons.kind in ("valu", "ds", "vmem"):
            if prod.w & (cons.r | cons.w): n = max(n, big)
            if cons.kind == "valu" and prod.srcc & cons.w: n = max(n, {8: 7, 4: 3}[P])
    if prod.kind == "salu":
        if cons.kind == "vmem" and getattr(cons, "islds", False) and sw & regs_of("m0"): n = max(n, 1)
    if prod.kind == "vmem" and getattr(prod, "widestore", False):
        if prod.sdata & cons.w: n = max(n, 2 if cons.kind in ("valu", "mfma") else 1)
    return n

class Asm:
    def __init__(self, pad=True):
        self.lines = []
        self.hist = []
        self.lbl = 0
        self.pad = pad
        self.nops = 0
    def _emit(self, l):
        ins = Ins(l)
        if self.pad and ins.kind != "nop":
            dist = 0; req = 0
            for p in reversed(self.hist):
                k = need(p, ins)
                if k > dist: req = max(req, k - dist)
                dist += p.ws
                if dist > 24: break
            while req > 0:
                k = min(req, 16)
                nop = Ins(f"s_nop {k-1}")
                self.lines.append(f"    s_nop {k-1}")
                self.hist.append(nop); self.nops += k
                req -= k
        self.lines.append("    " + l)
        self.hist.append(ins)
        if len(self.hist) > 64: self.hist = self.hist[-40:]
    def __call__(self, s):
        for l in s.strip("\n").split("\n"):
            l = l.strip()
            if not l: continue
            if l.startswith(";") or l.startswith("."):
                self.lines.append("    " + l)
            elif l.endswith(":"):
                self.lines.append(l)
            else:
                self._emit(l)
    def label(self, name):
        self.lines.append(name + ":")
    def newlabel(self, p="L"):
        self.lbl += 1
        return f"{p}_{self.lbl}"
    def comment(self, s):
        self.lines.append("    ; " + s)
    def text(self):
        return "\n".join(self.lines) + "\n"

HEADER = """; Kernarg layout for this problem (88 bytes, ptrs only, base s[0:1]):
"""

def kernel_file(kernels, launches):
    out = HEADER
    if len(launches) == 1 and launches[0][0] == NAME + "_kernel":
        l, g, b, lds = launches[0]
        out += f"; @launch grid=({g},1,1) block=({b},1,1) lds={lds}\n"
    else:
        for l, g, b, lds in launches:
            out += f"; @launch kernel={l} grid=({g},1,1) block=({b},1,1) lds={lds}\n"
    out += '.amdgcn_target "amdgcn-amd-amdhsa--gfx950"\n.text\n'
    for label, body, nv, acc, ns in kernels:
        out += f".globl {label}\n.p2align 8\n.type {label},@function\n{label}:\n"
        out += body
        out += "    s_endpgm\n"
    out += '.section .rodata,"a"\n'
    for label, body, nv, acc, ns in kernels:
        out += f""".p2align 6
.amdhsa_kernel {label}
  .amdhsa_next_free_vgpr {nv}
  .amdhsa_next_free_sgpr {ns}
  .amdhsa_accum_offset {acc}
  .amdhsa_group_segment_fixed_size 0
  .amdhsa_kernarg_size 88
  .amdhsa_user_sgpr_count 2
  .amdhsa_user_sgpr_kernarg_segment_ptr 1
  .amdhsa_system_sgpr_workgroup_id_x 1
.end_amdhsa_kernel
"""
    return out

class Stamps:
    def __init__(self, a, enabled, kid, base=64 << 20):
        self.a, self.en, self.kid, self.base, self.n = a, enabled, kid, base, 0
        self.names = []
    def __call__(self, name):
        if not self.en: return
        assert self.n < 14
        self.a(f"s_memrealtime s[{70+2*self.n}:{71+2*self.n}]")
        self.names.append(name); self.n += 1
    def dump(self, srd="s[28:31]", wave="s9", lane="v2", vt=0):
        if not self.en: return
        a = self.a
        a("s_waitcnt vmcnt(0)")
        self("end")
        a("s_waitcnt lgkmcnt(0)")
        a(f"s_add_u32 s98, s2, {self.kid*256}")
        a("s_lshl_b32 s98, s98, 3")
        a(f"s_add_u32 s98, s98, {wave}")
        a("s_lshl_b32 s98, s98, 6")
        a(f"s_add_u32 s98, s98, {self.base:#x}")
        a(f"v_cmp_eq_u32 vcc, 0, {lane}")
        a("s_and_saveexec_b64 s[100:101], vcc")
        a(f"v_mov_b32 v{vt+16}, 0")
        for i in range(16):
            a(f"v_mov_b32 v{vt+i}, " + (f"s{70+2*i}" if i < self.n else "0"))
        for q in range(4):
            a(f"buffer_store_dwordx4 v[{vt+4*q}:{vt+4*q+3}], v{vt+16}, {srd}, s98 offen offset:{16*q}")
        a("s_mov_b64 exec, s[100:101]")
```

```python
import sys
from asmlib import *

PART = 0
REC = 2176
PHIQ = 4 << 20
OFR = 16 << 20
STAMP = 64 << 20
LOG2E = 0x3fb8aa3b
NLOG2E = 0xbfb8aa3b

STAMPS = '--stamps' in sys.argv
NAMES = []
def vr(b, n): return f"v[{b}:{b+n-1}]"

def decode(a, endlabel):
    a(f"""
    s_cmp_ge_u32 s2, 256
    s_cbranch_scc1 {endlabel}
    s_and_b32 s3, s2, 7
    s_lshr_b32 s4, s2, 3
    s_lshr_b32 s5, s3, 2
    s_lshl_b32 s8, s5, 5
    s_load_dwordx8 s[12:19], s[0:1], s8
    s_load_dwordx4 s[40:43], s[0:1], 64
    s_load_dwordx2 s[44:45], s[0:1], 80
    v_lshrrev_b32 v1, 6, v0
    v_and_b32 v2, 63, v0
    v_readfirstlane_b32 s9, v1
    s_and_b32 s6, s4, 7
    s_lshr_b32 s7, s4, 3
    s_lshl_b32 s66, s7, 1
    s_add_u32 s66, s66, s6
    s_and_b32 s8, s3, 1
    s_lshl_b32 s8, s8, 3
    s_add_u32 s6, s6, s8
    s_lshr_b32 s8, s3, 1
    s_and_b32 s8, s8, 1
    s_lshl_b32 s8, s8, 2
    s_add_u32 s7, s7, s8
    s_and_b32 s10, s9, 1
    s_lshr_b32 s11, s9, 1
    """)

def srd(a, d, lo, nbytes):
    a(f"s_mov_b32 s{d}, s{lo}\ns_mov_b32 s{d+1}, s{lo+1}\ns_mov_b32 s{d+2}, {nbytes:#x}\ns_mov_b32 s{d+3}, 0x20000")

def softmax(a, P, O, T, sc, snc):
    m1, m2 = T, T + 1
    a(f"v_max3_f32 v{m1}, v{P}, v{P+1}, v{P+2}")
    a(f"v_max3_f32 v{m2}, v{P+3}, v{P+4}, v{P+5}")
    a(f"v_max3_f32 v{m1}, v{m1}, v{P+6}, v{P+7}")
    a(f"v_max3_f32 v{m2}, v{m2}, v{P+8}, v{P+9}")
    a(f"v_max3_f32 v{m1}, v{m1}, v{P+10}, v{P+11}")
    a(f"v_max3_f32 v{m2}, v{m2}, v{P+12}, v{P+13}")
    a(f"v_max3_f32 v{m1}, v{m1}, v{P+14}, v{P+15}")
    a(f"v_max_f32 v{m1}, v{m1}, v{m2}")
    a(f"v_mul_f32 v{m1}, s{snc}, v{m1}")
    for r in range(0, 16, 2):
        a(f"v_pk_fma_f32 {vr(P+r,2)}, {vr(P+r,2)}, s[{sc}:{sc+1}], {vr(m1,2)} op_sel_hi:[1,1,0]")
    for r in range(16):
        a(f"v_exp_f32 v{P+r}, v{P+r}")
    s0 = T; s1 = T + 2
    a(f"v_pk_add_f32 {vr(s0,2)}, {vr(P,2)}, {vr(P+2,2)}")
    a(f"v_pk_add_f32 {vr(s1,2)}, {vr(P+4,2)}, {vr(P+6,2)}")
    a(f"v_pk_add_f32 {vr(s0,2)}, {vr(s0,2)}, {vr(P+8,2)}")
    a(f"v_pk_add_f32 {vr(s1,2)}, {vr(s1,2)}, {vr(P+10,2)}")
    a(f"v_pk_add_f32 {vr(s0,2)}, {vr(s0,2)}, {vr(P+12,2)}")
    a(f"v_pk_add_f32 {vr(s1,2)}, {vr(s1,2)}, {vr(P+14,2)}")
    a(f"v_pk_add_f32 {vr(s0,2)}, {vr(s0,2)}, {vr(s1,2)}")
    a(f"v_add_f32 v{s0}, v{s0}, v{s0+1}")
    a(f"v_rcp_f32 v{s0}, v{s0}")
    for r in range(0, 16, 2):
        a(f"v_pk_mul_f32 {vr(P+r,2)}, {vr(P+r,2)}, {vr(s0,2)} op_sel_hi:[1,0]")
    for r in range(0, 16, 2):
        a(f"v_cvt_pk_bf16_f32 v{O+r//2}, v{P+r}, v{P+r+1}")

def k1():
    a = Asm()
    st = Stamps(a, STAMPS, 0); NAMES.append(st.names)
    st('start')
    decode(a, "K1_end")
    XV = 4
    WV = 8
    a("v_lshrrev_b32 v3, 3, v2")
    a("v_and_b32 v9, 7, v2")
    a("v_lshrrev_b32 v10, 1, v3")
    for i in range(4):
        a(f"v_xor_b32 v11, v9, v10")
        if i & 1: a("v_xor_b32 v11, 4, v11")
        a(f"v_lshlrev_b32 v11, 4, v11")
        a(f"v_lshl_add_u32 v{XV+i}, v3, 10, v11")
        if i: a(f"v_add_u32 v{XV+i}, {i*8192 - i*1024}, v{XV+i}")
    a("v_and_b32 v11, 1, v10")
    a("v_lshlrev_b32 v11, 2, v11")
    a("v_xor_b32 v11, v9, v11")
    a("v_lshlrev_b32 v11, 4, v11")
    a("v_mul_u32_u24 v12, 3072, v3")
    a(f"v_add_u32 v{WV}, v11, v12")
    a("s_lshl_b32 s36, s6, 17")
    a("s_lshl_b32 s8, s9, 15")
    a("s_add_u32 s36, s36, s8")
    a("s_lshl_b32 s37, s7, 7")
    a("s_mul_i32 s8, s9, 49152")
    a("s_add_u32 s37, s37, s8")
    a("s_mul_i32 s38, s9, 10240")
    XA = 160
    WA = 168
    a("v_and_b32 v3, 31, v2")
    a("v_lshrrev_b32 v9, 5, v2")
    a("v_bfe_u32 v10, v2, 1, 3")
    a("s_mul_i32 s8, s10, 20480")
    for ks in range(4):
        a(f"v_or_b32 v11, {2*ks}, v9")
        a("v_xor_b32 v11, v11, v10")
        a("v_lshlrev_b32 v11, 4, v11")
        a("v_lshl_add_u32 v11, v3, 7, v11")
        a(f"v_add_u32 v{XA+ks}, s8, v11")
        a(f"v_add_u32 v{XA+4+ks}, 81920, v{XA+ks}")
    a("v_bfe_u32 v10, v2, 4, 1")
    a("v_xor_b32 v10, s10, v10")
    a("v_lshlrev_b32 v10, 1, v10")
    a("v_bfe_u32 v11, v2, 1, 1")
    a("v_or_b32 v10, v10, v11")
    a("s_lshl_b32 s8, s11, 2")
    a("v_or_b32 v10, s8, v10")
    a("v_bfe_u32 v11, v2, 3, 1")
    a("v_lshlrev_b32 v11, 2, v11")
    a("v_xor_b32 v10, v10, v11")
    a("v_lshlrev_b32 v10, 4, v10")
    a("v_and_b32 v11, 1, v2")
    a("v_lshl_add_u32 v10, v11, 3, v10")
    a("v_bfe_u32 v11, v2, 2, 2")
    a("v_lshl_add_u32 v10, v11, 7, v10")
    a("v_mul_u32_u24 v11, 3072, v9")
    a("v_add_u32 v10, v10, v11")
    for s in range(4):
        a(f"v_add_u32 v{WA+s}, {4096 + s*40960}, v10")
    a("v_and_b32 v10, 3, v2")
    a("v_bfe_u32 v11, v2, 3, 2")
    a("v_lshl_add_u32 v10, v11, 2, v10")
    a("v_lshlrev_b32 v10, 1, v10")
    a("v_lshl_add_u32 v13, v9, 7, v10")
    a("s_lshl_b32 s46, s7, 2")
    a("s_lshl_b32 s8, s11, 1")
    a("s_add_u32 s46, s46, s8")
    a("s_add_u32 s47, s46, s10")
    a("s_xor_b32 s8, s10, 1")
    a("s_add_u32 s48, s46, s8")
    a("s_lshl_b32 s49, s47, 9")
    a("s_lshl_b32 s50, s48, 9")
    a("s_waitcnt lgkmcnt(0)")
    srd(a, 20, 12, 0x200000)
    srd(a, 24, 14, 0x180000)
    srd(a, 28, 44, 0x10000000)
    srd(a, 32, 16, 0x4000)

    def dma_chunk(t):
        slot = t % 4
        a(f"s_add_u32 s39, s66, {t}")
        a("s_and_b32 s39, s39, 7")
        a("s_lshl_b32 s51, s39, 7")
        a("s_add_u32 s51, s51, s36")
        a("s_mul_i32 s52, s39, 196608")
        a("s_add_u32 s52, s52, s37")
        a("s_add_u32 s53, s52, 24576")
        a(f"s_add_u32 m0, s38, {slot*40960}")
        for i in range(4):
            a(f"buffer_load_dwordx4 v{XV+i}, s[20:23], s51 offen offset:{i*1024} lds")
        a(f"s_add_u32 m0, s38, {slot*40960+4096}")
        for e in range(3):
            a(f"buffer_load_dwordx4 v{WV}, s[24:27], s52 offen offset:{e*1024} lds")
        a(f"s_add_u32 m0, s38, {slot*40960+7168}")
        for e in range(3):
            a(f"buffer_load_dwordx4 v{WV}, s[24:27], s53 offen offset:{e*1024} lds")
    st("pro")
    dma_chunk(0)
    WP = 176
    for hh in range(2):
        for j in range(8):
            a(f"buffer_load_ushort v{WP+hh*8+j}, v13, s[32:35], s{49+hh} offen offset:{((j&3)+8*(j>>2))*32}")
    for t in range(1, 4): dma_chunk(t)
    ACC = 64
    Q = [64, 80]; K = [96, 112]; V = [128, 144]
    FS = [16, 36]
    def reads(t, ks, fs):
        slot = t % 4
        xa = XA + 4 * (slot // 2) + ks
        xo = (slot % 2) * 40960
        r = [f"ds_read_b128 {vr(fs,4)}, v{xa} offset:{xo}",
             f"ds_read_b128 {vr(fs+4,4)}, v{xa} offset:{xo+10240}"]
        for seg in range(3):
            for half in range(2):
                r.append(f"ds_read_b64_tr_b16 {vr(fs+8+seg*4+half*2,2)}, v{WA+slot} offset:{ks*10240+seg*1024+half*512}")
        return r
    def mfmas(fs, first):
        x0, x1, wq, wk, wv = vr(fs,4), vr(fs+4,4), vr(fs+8,4), vr(fs+12,4), vr(fs+16,4)
        def c(b): return "0" if first else vr(b,16)
        return [f"v_mfma_f32_32x32x16_bf16 {vr(Q[0],16)}, {wq}, {x0}, {c(Q[0])}",
                f"v_mfma_f32_32x32x16_bf16 {vr(Q[1],16)}, {wq}, {x1}, {c(Q[1])}",
                f"v_mfma_f32_32x32x16_bf16 {vr(K[0],16)}, {wk}, {x0}, {c(K[0])}",
                f"v_mfma_f32_32x32x16_bf16 {vr(K[1],16)}, {wk}, {x1}, {c(K[1])}",
                f"v_mfma_f32_32x32x16_bf16 {vr(V[0],16)}, {x0}, {wv}, {c(V[0])}",
                f"v_mfma_f32_32x32x16_bf16 {vr(V[1],16)}, {x1}, {wv}, {c(V[1])}"]
    st("issued")
    a("s_waitcnt vmcnt(46)")
    a("s_barrier")
    st("c0")
    for r in reads(0, 0, FS[0]): a(r)
    a("s_waitcnt lgkmcnt(0)")
    step = 0
    for t in range(8):
        for ks in range(4):
            cur = FS[step % 2]; nxt = FS[(step + 1) % 2]
            m = mfmas(cur, step == 0)
            if ks < 3:
                rd = reads(t, ks + 1, nxt)
            elif t < 7:
                n = 10 * (min(t + 3, 7) - (t + 1))
                a(f"s_waitcnt vmcnt({n})")
                a("s_barrier")
                if t in (1, 3, 5): st(f"c{t+1}")
                rd = reads(t + 1, 0, nxt)
            else:
                rd = []
            for i in range(6):
                a(m[i])
                for r in rd[2*i:2*i+2]: a(r)
                if ks == 3 and t + 4 <= 7 and i == 4:
                    dma_chunk(t + 4)
            a("s_waitcnt lgkmcnt(0)")
            step += 1
    st("loop")
    a("s_barrier")
    WPH = 56
    for hh in range(2):
        for j in range(0, 8, 2):
            a(f"v_lshl_or_b32 v{WPH+hh*4+j//2}, v{WP+hh*8+j+1}, 16, v{WP+hh*8+j}")
    a("v_bfe_u32 v10, v2, 2, 1")
    a("v_mul_u32_u24 v10, 0x8000, v10")
    a("v_lshl_or_b32 v10, v10, 16, v10")
    for i in range(8):
        a(f"v_xor_b32 v{WPH+i}, v10, v{WPH+i}")
    a(f"s_mov_b32 s54, {LOG2E:#x}\ns_mov_b32 s55, {LOG2E:#x}\ns_mov_b32 s56, {NLOG2E:#x}\ns_mov_b32 s57, 0x3f803f80")
    OP = 16
    def cvt8(dst, src):
        for j in range(0, 8, 2):
            a(f"v_cvt_pk_bf16_f32 v{dst+j//2}, v{src+j}, v{src+j+1}")
    for sb in range(2):
        for hh in range(2):
            cvt8(OP + (sb*2+hh)*4, K[sb] + 8*hh)
    PT = [96, 112, 192, 208]
    for sb in range(2):
        for hh in range(2):
            a(f"v_mfma_f32_32x32x16_bf16 {vr(PT[sb*2+hh],16)}, {vr(WPH+hh*4,4)}, {vr(OP+(sb*2+hh)*4,4)}, 0")
    VO = 32
    for sb in range(2):
        cvt8(VO + sb*8, V[sb]); cvt8(VO + sb*8 + 4, V[sb] + 8)
    a("v_and_b32 v10, 16, v2")
    a("v_cmp_eq_u32 vcc, 0, v10")
    a("v_mov_b32 v11, s57")
    for i in range(16):
        a(f"v_cndmask_b32 v{224+i}, v11, v{VO+i}, vcc")
    for i in range(16):
        a(f"v_cndmask_b32 v{240+i}, v{VO+i}, v11, vcc")
    a("s_lshl_b32 s8, s9, 13")
    a("v_and_b32 v10, 31, v2")
    a("v_lshlrev_b32 v10, 6, v10")
    a("v_lshl_add_u32 v10, v9, 5, v10")
    a("v_add_u32 v14, s8, v10")
    a("v_bfe_u32 v10, v2, 2, 2")
    a("v_lshl_add_u32 v10, v9, 2, v10")
    a("v_lshlrev_b32 v10, 6, v10")
    a("v_and_b32 v11, 1, v2")
    a("v_lshl_add_u32 v10, v11, 5, v10")
    a("v_bfe_u32 v11, v2, 4, 1")
    a("v_lshl_add_u32 v10, v11, 4, v10")
    a("v_bfe_u32 v11, v2, 1, 1")
    a("v_lshl_add_u32 v10, v11, 3, v10")
    a("v_add_u32 v15, s8, v10")
    PH = 128
    for tile in range(4):
        softmax(a, PT[tile], PH + tile*8, 48, 54, 56)
        a(f"ds_write_b128 v14, {vr(PH+tile*8,4)} offset:{tile*2048}")
        a(f"ds_write_b128 v14, {vr(PH+tile*8+4,4)} offset:{tile*2048+16}")
    a("s_waitcnt lgkmcnt(0)")
    AT = 96
    for tile in range(4):
        for t in range(2):
            for half in range(2):
                a(f"ds_read_b64_tr_b16 {vr(AT+tile*8+t*4+half*2,2)}, v15 offset:{tile*2048+t*1024+half*512}")
    for sb in range(2):
        for hh in range(2):
            cvt8(OP + (sb*2+hh)*4, Q[sb] + 8*hh)
    a("s_waitcnt lgkmcnt(0)")
    KV = [192, 208]
    for sb in range(2):
        for t in range(2):
            for hh in range(2):
                c = "0" if (sb == 0 and t == 0) else vr(KV[hh],16)
                a(f"v_mfma_f32_32x32x16_bf16 {vr(KV[hh],16)}, {vr(AT+(sb*2+hh)*8+t*4,4)}, {vr(224+hh*16+sb*8+t*4,4)}, {c}")
    PQ = [64, 80, 128, 144]
    for sb in range(2):
        for hh in range(2):
            a(f"v_mfma_f32_32x32x16_bf16 {vr(PQ[sb*2+hh],16)}, {vr(WPH+hh*4,4)}, {vr(OP+(sb*2+hh)*4,4)}, 0")
    a("s_xor_b32 s8, s9, 1")
    a("s_lshl_b32 s8, s8, 12")
    a("v_xor_b32 v10, 16, v2")
    a("v_lshlrev_b32 v10, 4, v10")
    a("v_add_u32 v10, s8, v10")
    for q in range(4):
        a(f"ds_write_b128 v10, {vr(KV[1]+q*4,4)} offset:{32768+q*1024}")
    a("s_lshl_b32 s8, s9, 12")
    a("v_lshlrev_b32 v10, 4, v2")
    a("v_add_u32 v10, s8, v10")
    a("s_waitcnt lgkmcnt(0)")
    a("s_barrier")
    for q in range(4):
        a(f"ds_read_b128 {vr(KV[1]+q*4,4)}, v10 offset:{32768+q*1024}")
    a("v_and_b32 v10, 15, v2")
    a("v_lshl_add_u32 v10, v9, 4, v10")
    a("v_add_u32 v11, 32, v9")
    a("v_and_b32 v12, 16, v2")
    a("v_cmp_eq_u32 vcc, 0, v12")
    a("v_cndmask_b32 v10, v11, v10, vcc")
    a("v_lshlrev_b32 v10, 4, v10")
    a("s_lshl_b32 s8, s5, 5")
    a("s_add_u32 s8, s8, s47")
    a("s_lshl_b32 s8, s8, 4")
    a("s_add_u32 s8, s8, s6")
    a(f"s_mul_i32 s58, s8, {REC}")
    a("s_waitcnt lgkmcnt(0)")
    for r in range(0, 16, 2):
        a(f"v_pk_add_f32 {vr(KV[0]+r,2)}, {vr(KV[0]+r,2)}, {vr(KV[1]+r,2)}")
    for q in range(4):
        a(f"buffer_store_dwordx4 {vr(KV[0]+q*4,4)}, v10, s[28:31], s58 offen offset:{q*544}")
    st("kv")
    a("v_lshlrev_b32 v11, 4, v2")
    for sb in range(2):
        for hh in range(2):
            tile = sb*2 + hh
            O = 96 + tile*8
            softmax(a, PQ[tile], O, 48, 54, 56)
            a("s_lshl_b32 s8, s5, 6")
            a("s_lshl_b32 s59, s6, 2")
            a("s_add_u32 s8, s8, s59")
            a("s_lshl_b32 s59, s10, 1")
            a("s_add_u32 s8, s8, s59")
            a(f"s_add_u32 s8, s8, {sb}")
            a("s_lshl_b32 s8, s8, 5")
            a(f"s_add_u32 s8, s8, s{47+hh}")
            a("s_lshl_b32 s8, s8, 11")
            a(f"s_add_u32 s8, s8, {PHIQ:#x}")
            a(f"buffer_store_dwordx4 {vr(O,4)}, v11, s[28:31], s8 offen")
            a(f"buffer_store_dwordx4 {vr(O+4,4)}, v11, s[28:31], s8 offen offset:1024")
    st.dump(vt=16)
    a.label("K1_end")
    return a

def k2():
    a = Asm()
    st = Stamps(a, STAMPS, 1); NAMES.append(st.names)
    st('start')
    decode(a, "K2_end")
    a("v_lshrrev_b32 v9, 5, v2")
    a("s_lshl_b32 s46, s7, 2")
    a("s_lshl_b32 s8, s11, 1")
    a("s_add_u32 s46, s46, s8")
    a("s_add_u32 s47, s46, s10")
    a("s_xor_b32 s8, s10, 1")
    a("s_add_u32 s48, s46, s8")
    a("v_and_b32 v10, 15, v2")
    a("v_lshl_add_u32 v10, v9, 4, v10")
    a("v_add_u32 v11, 32, v9")
    a("v_and_b32 v12, 16, v2")
    a("v_cmp_eq_u32 vcc, 0, v12")
    a("v_cndmask_b32 v10, v11, v10, vcc")
    a("v_lshlrev_b32 v10, 4, v10")
    a("v_lshlrev_b32 v11, 4, v2")
    a("s_lshl_b32 s8, s5, 5")
    a("s_add_u32 s8, s8, s47")
    a(f"s_mul_i32 s58, s8, {REC*16}")
    a("s_waitcnt lgkmcnt(0)")
    srd(a, 28, 44, 0x10000000)
    for sb in range(2):
        for hh in range(2):
            tile = sb*2 + hh
            a("s_lshl_b32 s8, s5, 6")
            a("s_lshl_b32 s59, s6, 2")
            a("s_add_u32 s8, s8, s59")
            a("s_lshl_b32 s59, s10, 1")
            a("s_add_u32 s8, s8, s59")
            a(f"s_add_u32 s8, s8, {sb}")
            a("s_lshl_b32 s8, s8, 5")
            a(f"s_add_u32 s8, s8, s{47+hh}")
            a(f"s_lshl_b32 s{60+tile}, s8, 10")
            a(f"s_add_u32 s{60+tile}, s{60+tile}, {OFR:#x}")
            a("s_lshl_b32 s8, s8, 11")
            a(f"s_add_u32 s8, s8, {PHIQ:#x}")
            a(f"buffer_load_dwordx4 {vr(16+tile*8,4)}, v11, s[28:31], s8 offen")
            a(f"buffer_load_dwordx4 {vr(16+tile*8+4,4)}, v11, s[28:31], s8 offen offset:1024")
    for b in range(2):
        for i in range(8):
            a(f"s_add_u32 s8, s58, {(b*8+i)*REC}")
            for q in range(4):
                a(f"buffer_load_dwordx4 {vr(64+i*16+q*4,4)}, v10, s[28:31], s8 offen offset:{q*544}")
        a("s_waitcnt vmcnt(0)")
        for i in range(8):
            for r in range(0, 16, 2):
                if b == 0 and i == 0:
                    continue
                src = vr(64+r,2) if (b == 0 and i == 1) else vr(48+r,2)
                a(f"v_pk_add_f32 {vr(48+r,2)}, {src}, {vr(64+i*16+r,2)}")
    st("red")
    KO = [64, 72]
    for r in range(0, 16, 2):
        a(f"v_cvt_pk_bf16_f32 v{KO[0]+r//2}, v{48+r}, v{48+r+1}")
    a("s_xor_b32 s8, s9, 1")
    a("s_lshl_b32 s8, s8, 11")
    a("v_add_u32 v12, s8, v11")
    a(f"ds_write_b128 v12, {vr(KO[0],4)}")
    a(f"ds_write_b128 v12, {vr(KO[0]+4,4)} offset:1024")
    a("s_lshl_b32 s8, s9, 11")
    a("v_add_u32 v12, s8, v11")
    a("s_waitcnt lgkmcnt(0)")
    a("s_barrier")
    a(f"ds_read_b128 {vr(KO[1],4)}, v12")
    a(f"ds_read_b128 {vr(KO[1]+4,4)}, v12 offset:1024")
    a("s_waitcnt lgkmcnt(0)")
    N = [96, 112, 128, 144]
    for t in range(2):
        for tile in range(4):
            hh = tile & 1
            c = "0" if t == 0 else vr(N[tile],16)
            a(f"v_mfma_f32_32x32x16_bf16 {vr(N[tile],16)}, {vr(KO[hh]+t*4,4)}, {vr(16+tile*8+t*4,4)}, {c}")
    for tile in range(4):
        n = N[tile]
        a(f"v_add_f32 v{n+8}, 0x358637bd, v{n+8}")
        a(f"v_rcp_f32 v{n+8}, v{n+8}")
        for r in range(0, 8, 2):
            a(f"v_pk_mul_f32 {vr(n+r,2)}, {vr(n+r,2)}, {vr(n+8,2)} op_sel_hi:[1,0]")
        for r in range(0, 8, 2):
            a(f"v_cvt_pk_bf16_f32 v{n+12+r//2}, v{n+r}, v{n+r+1}")
        a(f"buffer_store_dwordx4 {vr(n+12,4)}, v11, s[28:31], s{60+tile} offen")
    st.dump(vt=16)
    a.label("K2_end")
    return a

def k3():
    a = Asm()
    st = Stamps(a, STAMPS, 2); NAMES.append(st.names)
    st('start')
    decode(a, "K3_end")
    a("v_lshrrev_b32 v9, 5, v2")
    a("v_lshrrev_b32 v3, 3, v2")
    a("v_and_b32 v10, 7, v2")
    a("v_bfe_u32 v11, v2, 4, 1")
    a("v_lshlrev_b32 v11, 1, v11")
    a("v_xor_b32 v10, v10, v11")
    a("v_lshlrev_b32 v10, 4, v10")
    a("v_lshl_add_u32 v10, v3, 10, v10")
    for i in range(4):
        a(f"v_add_u32 v{4+i}, {i*8192-i*1024}, v10")
    a("s_lshl_b32 s36, s7, 7")
    a("s_lshl_b32 s8, s9, 17")
    a("s_add_u32 s36, s36, s8")
    a("s_lshl_b32 s38, s9, 14")
    a("s_lshl_b32 s8, s5, 6")
    a("s_lshl_b32 s59, s6, 2")
    a("s_add_u32 s8, s8, s59")
    a("s_add_u32 s8, s8, s9")
    a("s_lshl_b32 s37, s8, 15")
    a(f"s_add_u32 s37, s37, {OFR:#x}")
    a("v_lshlrev_b32 v11, 4, v2")
    a("v_bfe_u32 v12, v2, 2, 2")
    a("v_lshl_add_u32 v12, v9, 2, v12")
    a("v_lshlrev_b32 v12, 7, v12")
    a("v_bfe_u32 v13, v2, 1, 1")
    a("v_lshl_add_u32 v12, v13, 3, v12")
    a("v_and_b32 v13, 1, v2")
    a("v_lshlrev_b32 v13, 2, v13")
    a("v_bfe_u32 v14, v2, 4, 1")
    a("v_or_b32 v13, v13, v14")
    a("v_bfe_u32 v14, v2, 3, 1")
    a("v_lshlrev_b32 v14, 1, v14")
    a("v_xor_b32 v13, v13, v14")
    a("v_lshl_add_u32 v14, v13, 4, v12")
    a("v_xor_b32 v13, 2, v13")
    a("v_lshl_add_u32 v15, v13, 4, v12")
    a("v_and_b32 v12, 31, v2")
    a("v_lshlrev_b32 v12, 11, v12")
    a("v_lshl_add_u32 v12, v9, 6, v12")
    a("s_lshl_b32 s39, s6, 18")
    a("s_lshl_b32 s8, s9, 16")
    a("s_add_u32 s39, s39, s8")
    a("s_lshl_b32 s8, s5, 10")
    a("s_add_u32 s39, s39, s8")
    a("s_lshl_b32 s8, s7, 7")
    a("s_add_u32 s39, s39, s8")
    a("s_waitcnt lgkmcnt(0)")
    srd(a, 20, 18, 0x80000)
    srd(a, 24, 40, 0x400000)
    srd(a, 28, 44, 0x10000000)
    for g in range(4):
        a(f"s_add_u32 m0, s38, {g*4096}")
        a(f"s_add_u32 s8, s36, {g*32768}")
        for i in range(4):
            a(f"buffer_load_dwordx4 v{4+i}, s[20:23], s8 offen offset:{i*1024} lds")
    OF = 128
    for h in range(32):
        if h % 4 == 0:
            a(f"s_add_u32 s8, s37, {h*1024}")
        a(f"buffer_load_dwordx4 {vr(OF+h*4,4)}, v11, s[28:31], s8 offen offset:{(h%4)*1024}")
    st("issued")
    a("s_waitcnt vmcnt(32)")
    a("s_barrier")
    st("wo")
    D = [64, 80]
    FS = [16, 24, 32, 40]
    def reads(h, fs):
        r = []
        for t in range(2):
            for half in range(2):
                r.append(f"ds_read_b64_tr_b16 {vr(fs+t*4+half*2,2)}, v{14+t} offset:{h*2048+half*1024}")
        return r
    for h in range(3):
        for r in reads(h, FS[h]): a(r)
    for h in range(32):
        if h + 3 < 32:
            for r in reads(h + 3, FS[(h+3) % 4]): a(r)
        outstanding = min(3, 31 - h) * 4
        a(f"s_waitcnt vmcnt({31-h}) lgkmcnt({outstanding})")
        fs = FS[h % 4]
        for t in range(2):
            c = "0" if h == 0 else vr(D[t],16)
            a(f"v_mfma_f32_32x32x16_bf16 {vr(D[t],16)}, {vr(fs+t*4,4)}, {vr(OF+h*4,4)}, {c}")
    st("mm")
    for t in range(2):
        for r in range(0, 16, 2):
            a(f"v_cvt_pk_bf16_f32 v{96+t*8+r//2}, v{D[t]+r}, v{D[t]+r+1}")
        a(f"buffer_store_dwordx4 {vr(96+t*8,4)}, v12, s[24:27], s39 offen offset:{t*32}")
        a(f"buffer_store_dwordx4 {vr(96+t*8+4,4)}, v12, s[24:27], s39 offen offset:{t*32+16}")
    st.dump(vt=16)
    a.label("K3_end")
    return a

if __name__ == "__main__":
    A, B, C = k1(), k2(), k3()
    print("nops", A.nops, B.nops, C.nops)
    txt = kernel_file([("k1_kernel", A.text(), 256, 256, 102), ("k2_kernel", B.text(), 192, 192, 102), ("k3_kernel", C.text(), 256, 256, 102)],
                      [("k1_kernel", 256, 256, 163840), ("k2_kernel", 256, 256, 8192), ("k3_kernel", 256, 256, 65536)])
    open(sys.argv[1] if len(sys.argv) > 1 else "v1.s", "w").write(txt)
    import json; json.dump(NAMES, open('names.json', 'w'))
```

```python
import sys
sys.argv = ["gen1.py"]
import gen1
from asmlib import *
A, B, C = gen1.k1(), gen1.k2(), gen1.k3()
ks = [("k1_kernel", A.text(), 256, 256, 102), ("k2_kernel", B.text(), 192, 192, 102), ("k3_kernel", C.text(), 256, 256, 102), ("e_kernel", "    s_nop 0\n", 8, 8, 16)]
ls = [("k1_kernel", 256, 256, 163840), ("k2_kernel", 256, 256, 8192), ("k3_kernel", 256, 256, 65536)]
e = ("e_kernel", 256, 256, 0)
open("x_e0.s", "w").write(kernel_file(ks[:3], ls))
open("x_e1.s", "w").write(kernel_file(ks, ls + [e]))
open("x_e4.s", "w").write(kernel_file(ks, ls + [e]*4))
open("x_p4.s", "w").write(kernel_file(ks, [e]*4 + ls))
open("x_p1.s", "w").write(kernel_file(ks, [e] + ls))
```

```python
import sys, json
from asmlib import *

PART = 0
REC = 1152
FLAG = 2 << 20
OFR = 16 << 20
LOG2E = 0x3fb8aa3b
NLOG2E = 0xbfb8aa3b
STAMPS = '--stamps' in sys.argv
def opt(name, default):
    for x in sys.argv:
        if x.startswith(f"--{name}="): return int(x.split("=")[1])
    return default
ROTMODE = opt("rot", 0)
NAMES = []
MFMA = "v_mfma_f32_32x32x16_bf16"
SPIN = 0x2000

def vr(b, n): return f"v[{b}:{b+n-1}]"

def decode(a, endlabel):
    a(f"""
    s_cmp_ge_u32 s2, 256
    s_cbranch_scc1 {endlabel}
    s_and_b32 s3, s2, 7
    s_lshr_b32 s4, s2, 3
    s_lshr_b32 s5, s3, 2
    s_lshl_b32 s8, s5, 5
    s_load_dwordx8 s[12:19], s[0:1], s8
    s_load_dwordx4 s[40:43], s[0:1], 64
    s_load_dwordx2 s[44:45], s[0:1], 80
    v_lshrrev_b32 v1, 6, v0
    v_and_b32 v2, 63, v0
    v_readfirstlane_b32 s9, v1
    s_and_b32 s67, s4, 7
    s_lshr_b32 s7, s4, 3
    """)
    if ROTMODE == 0:
        a("s_lshl_b32 s66, s7, 1\ns_add_u32 s66, s66, s67")
    elif ROTMODE == 1:
        a("s_and_b32 s66, s7, 1\ns_lshl_b32 s66, s66, 2\ns_add_u32 s66, s66, s67")
    elif ROTMODE == 2:
        a("s_mov_b32 s66, s67")
    a("""
    s_and_b32 s8, s3, 1
    s_lshl_b32 s8, s8, 3
    s_add_u32 s6, s67, s8
    s_lshr_b32 s8, s3, 1
    s_and_b32 s8, s8, 1
    s_lshl_b32 s8, s8, 2
    s_add_u32 s7, s7, s8
    """)

def srd(a, d, lo, nbytes):
    a(f"s_mov_b32 s{d}, s{lo}\ns_mov_b32 s{d+1}, s{lo+1}\ns_mov_b32 s{d+2}, {nbytes:#x}\ns_mov_b32 s{d+3}, 0x20000")

def softmax(P, O, T, sc, snc):
    L = []
    m1, m2 = T, T + 1
    L += [f"v_max3_f32 v{m1}, v{P}, v{P+1}, v{P+2}",
          f"v_max3_f32 v{m2}, v{P+3}, v{P+4}, v{P+5}",
          f"v_max3_f32 v{m1}, v{m1}, v{P+6}, v{P+7}",
          f"v_max3_f32 v{m2}, v{m2}, v{P+8}, v{P+9}",
          f"v_max3_f32 v{m1}, v{m1}, v{P+10}, v{P+11}",
          f"v_max3_f32 v{m2}, v{m2}, v{P+12}, v{P+13}",
          f"v_max3_f32 v{m1}, v{m1}, v{P+14}, v{P+15}",
          f"v_max_f32 v{m1}, v{m1}, v{m2}",
          f"v_mul_f32 v{m1}, s{snc}, v{m1}"]
    for r in range(0, 16, 2):
        L.append(f"v_pk_fma_f32 {vr(P+r,2)}, {vr(P+r,2)}, s[{sc}:{sc+1}], {vr(m1,2)} op_sel_hi:[1,1,0]")
    for r in range(16):
        L.append(f"v_exp_f32 v{P+r}, v{P+r}")
    s0 = T; s1 = T + 2
    L += [f"v_pk_add_f32 {vr(s0,2)}, {vr(P,2)}, {vr(P+2,2)}",
          f"v_pk_add_f32 {vr(s1,2)}, {vr(P+4,2)}, {vr(P+6,2)}",
          f"v_pk_add_f32 {vr(s0,2)}, {vr(s0,2)}, {vr(P+8,2)}",
          f"v_pk_add_f32 {vr(s1,2)}, {vr(s1,2)}, {vr(P+10,2)}",
          f"v_pk_add_f32 {vr(s0,2)}, {vr(s0,2)}, {vr(P+12,2)}",
          f"v_pk_add_f32 {vr(s1,2)}, {vr(s1,2)}, {vr(P+14,2)}",
          f"v_pk_add_f32 {vr(s0,2)}, {vr(s0,2)}, {vr(s1,2)}",
          f"v_add_f32 v{s0}, v{s0}, v{s0+1}",
          f"v_rcp_f32 v{s0}, v{s0}"]
    for r in range(0, 16, 2):
        L.append(f"v_pk_mul_f32 {vr(P+r,2)}, {vr(P+r,2)}, {vr(s0,2)} op_sel_hi:[1,0]")
    for r in range(0, 16, 2):
        L.append(f"v_cvt_pk_bf16_f32 v{O+r//2}, v{P+r}, v{P+r+1}")
    return L

def zip2(A, B):
    out = []
    for x, y in zip(A, B): out += [x, y]
    return out

def cvt8(a, dst, src):
    for j in range(0, 8, 2):
        a(f"v_cvt_pk_bf16_f32 v{dst+j//2}, v{src+j}, v{src+j+1}")

SLOT = 32768
WQ = 98304
WPHI_LDS = WQ + 63488
SCR_T = 65536
SCR_X = 81920
SCR_K = 65536

def wphi_addr(a, vdst):
    a("v_bfe_u32 v10, v2, 2, 2")
    a("v_lshl_add_u32 v10, v9, 2, v10")
    a("v_lshlrev_b32 v10, 5, v10")
    a("v_bfe_u32 v11, v2, 4, 1")
    a("v_lshl_add_u32 v10, v11, 4, v10")
    a("v_bfe_u32 v11, v2, 1, 1")
    a(f"v_lshl_add_u32 v{vdst}, v11, 3, v10")

def signmask(a, vdst):
    a(f"v_bfe_u32 v{vdst}, v2, 2, 1")
    a(f"v_mul_u32_u24 v{vdst}, 0x8000, v{vdst}")
    a(f"v_lshl_or_b32 v{vdst}, v{vdst}, 16, v{vdst}")

def wo_voff(a, vdst):
    a("v_and_b32 v10, 7, v2")
    a("v_bfe_u32 v11, v2, 4, 1")
    a("v_lshlrev_b32 v11, 1, v11")
    a("v_xor_b32 v10, v10, v11")
    a("v_lshlrev_b32 v10, 4, v10")
    a("v_lshrrev_b32 v11, 3, v2")
    a(f"v_lshl_add_u32 v{vdst}, v11, 10, v10")

def wo_dma(a, half, vo, sw, srdn):
    for i in range(8):
        a(f"s_add_u32 s8, s{sw}, {4*i}")
        a("s_and_b32 s8, s8, 31")
        a("s_lshl_b32 s57, s8, 10")
        a(f"s_add_u32 m0, s57, {half*32768}")
        a("s_lshl_b32 s8, s8, 13")
        a("s_add_u32 s8, s8, s46")
        a(f"buffer_load_dwordx4 v{vo}, s[{srdn}:{srdn+3}], s8 offen lds" if half == 0 else
          f"s_add_u32 s8, s8, 0x40000\nbuffer_load_dwordx4 v{vo}, s[{srdn}:{srdn+3}], s8 offen lds")

def kern():
    a = Asm()
    st = Stamps(a, STAMPS, 0); NAMES.append(st.names)
    st('start')
    decode(a, "K_end")
    a("v_lshrrev_b32 v9, 5, v2")
    a(f"s_mov_b32 s54, {LOG2E:#x}\ns_mov_b32 s55, {LOG2E:#x}\ns_mov_b32 s56, {NLOG2E:#x}")
    a("s_lshl_b32 s46, s7, 7")
    a("s_cmp_ge_u32 s9, 4")
    a("s_cbranch_scc1 K_loader")
    a("s_and_b32 s10, s9, 1")
    a("s_lshr_b32 s11, s9, 1")
    a("s_lshl_b32 s8, s11, 1")
    a("s_add_u32 s47, s8, s10")
    a("s_xor_b32 s48, s47, 1")
    a("v_and_b32 v10, 15, v2")
    a("v_lshl_add_u32 v10, v9, 4, v10")
    a("v_add_u32 v11, 32, v9")
    a("v_bfe_i32 v12, v2, 4, 1")
    a("v_bfi_b32 v10, v12, v11, v10")
    a("v_lshlrev_b32 v140, 4, v10")
    a("v_lshlrev_b32 v141, 4, v2")
    a("s_lshl_b32 s8, s5, 5")
    a("s_lshl_b32 s57, s7, 2")
    a("s_add_u32 s8, s8, s57")
    a("s_add_u32 s8, s8, s47")
    a(f"s_mul_i32 s58, s8, {REC*16}")
    a(f"s_mul_i32 s59, s6, {REC}")
    a("s_add_u32 s59, s59, s58")
    a("s_lshl_b32 s8, s5, 6")
    a("s_lshl_b32 s57, s6, 2")
    a("s_add_u32 s8, s8, s57")
    a("s_add_u32 s8, s8, s9")
    a("s_lshl_b32 s37, s8, 15")
    a(f"s_add_u32 s37, s37, {OFR:#x}")
    a("s_lshl_b32 s8, s7, 12")
    a("s_add_u32 s38, s37, s8")
    for i in range(4): a(f"v_mov_b32 v{16+i}, -1")
    a("s_waitcnt lgkmcnt(0)")
    srd(a, 28, 44, 0x10000000)
    a("buffer_store_dwordx4 v[16:19], v140, s[28:31], s59 offen sc1")
    a("buffer_store_dwordx4 v[16:19], v140, s[28:31], s59 offen offset:544 sc1")
    for j in range(4):
        a(f"buffer_store_dwordx4 v[16:19], v141, s[28:31], s38 offen offset:{j*1024} sc1")
    srd(a, 20, 18, 0x80000)
    srd(a, 24, 40, 0x400000)
    XA = 128; WA = 136
    a("v_and_b32 v3, 31, v2")
    a("v_bfe_u32 v10, v2, 1, 3")
    a("s_lshl_b32 s8, s10, 14")
    for ks in range(4):
        a(f"v_or_b32 v11, {2*ks}, v9")
        a("v_xor_b32 v11, v11, v10")
        a("v_lshlrev_b32 v11, 4, v11")
        a("v_lshl_add_u32 v11, v3, 7, v11")
        a(f"v_add_u32 v{XA+ks}, s8, v11")
        a(f"v_add_u32 v{XA+4+ks}, 65536, v{XA+ks}")
    a("v_bfe_u32 v10, v2, 4, 1")
    a("v_xor_b32 v10, s10, v10")
    a("v_lshlrev_b32 v10, 1, v10")
    a("v_bfe_u32 v11, v2, 1, 1")
    a("v_or_b32 v10, v10, v11")
    a("s_lshl_b32 s8, s11, 2")
    a("v_or_b32 v10, s8, v10")
    a("v_bfe_u32 v11, v2, 3, 1")
    a("v_lshlrev_b32 v11, 2, v11")
    a("v_xor_b32 v10, v10, v11")
    a("v_lshlrev_b32 v10, 4, v10")
    a("v_and_b32 v11, 1, v2")
    a("v_lshl_add_u32 v10, v11, 3, v10")
    a("v_bfe_u32 v11, v2, 2, 2")
    a("v_lshl_add_u32 v10, v11, 7, v10")
    a("v_lshl_add_u32 v10, v9, 11, v10")
    a(f"v_add_u32 v{WA}, 4096, v10")
    a(f"v_add_u32 v{WA+1}, {4096+65536}, v10")
    wphi_addr(a, 13)
    a("s_lshl_b32 s8, s47, 9")
    a(f"s_add_u32 s8, s8, {WPHI_LDS}")
    a("v_add_u32 v138, s8, v13")
    a("s_lshl_b32 s8, s48, 9")
    a(f"s_add_u32 s8, s8, {WPHI_LDS}")
    a("v_add_u32 v139, s8, v13")
    a("s_lshl_b32 s8, s9, 12")
    a(f"s_add_u32 s8, s8, {SCR_T}")
    a("v_lshlrev_b32 v10, 6, v3")
    a("v_lshl_add_u32 v10, v9, 5, v10")
    a("v_add_u32 v142, s8, v10")
    a("v_bfe_u32 v10, v2, 2, 2")
    a("v_lshl_add_u32 v10, v9, 2, v10")
    a("v_lshlrev_b32 v10, 6, v10")
    a("v_and_b32 v11, 1, v2")
    a("v_lshl_add_u32 v10, v11, 5, v10")
    a("v_bfe_u32 v11, v2, 4, 1")
    a("v_lshl_add_u32 v10, v11, 4, v10")
    a("v_bfe_u32 v11, v2, 1, 1")
    a("v_lshl_add_u32 v10, v11, 3, v10")
    a("v_add_u32 v143, s8, v10")
    a("s_xor_b32 s8, s9, 1")
    a("s_lshl_b32 s8, s8, 12")
    a(f"s_add_u32 s8, s8, {SCR_X}")
    a("v_xor_b32 v10, 16, v2")
    a("v_lshlrev_b32 v10, 4, v10")
    a("v_add_u32 v4, s8, v10")
    a("s_lshl_b32 s8, s9, 12")
    a(f"s_add_u32 s8, s8, {SCR_X}")
    a("v_add_u32 v5, s8, v141")
    signmask(a, 6)
    wo_voff(a, 7)
    VM = 224
    for i in range(32): a(f"v_mov_b32 v{VM+i}, 0x3f803f80")
    a("s_mov_b32 s60, 0x0000ffff\ns_mov_b32 s61, 0x0000ffff")
    a("s_movk_i32 s62, -2")
    a("s_lshl_b32 s63, s67, 2")
    a("s_add_u32 s63, s63, s9")
    K = [64, 80]; V = [96, 112]
    FS = [16, 32, 48]
    def reads(step):
        t, ks = divmod(step, 4)
        fs = FS[step % 3]
        slot = t % 3
        xa = XA + (4 if slot == 2 else 0) + ks
        wa = WA + (1 if slot == 2 else 0)
        so = SLOT if slot == 1 else 0
        return [f"ds_read_b128 {vr(fs,4)}, v{xa} offset:{so}",
                f"ds_read_b64_tr_b16 {vr(fs+8,2)}, v{wa} offset:{so+ks*8192}",
                f"ds_read_b64_tr_b16 {vr(fs+10,2)}, v{wa} offset:{so+ks*8192+512}",
                f"ds_read_b128 {vr(fs+4,4)}, v{xa} offset:{so+8192}",
                f"ds_read_b64_tr_b16 {vr(fs+12,2)}, v{wa} offset:{so+ks*8192+1024}",
                f"ds_read_b64_tr_b16 {vr(fs+14,2)}, v{wa} offset:{so+ks*8192+1536}"]
    def mfmas(step):
        fs = FS[step % 3]
        x0, x1, wk, wv = vr(fs,4), vr(fs+4,4), vr(fs+8,4), vr(fs+12,4)
        def c(b): return "0" if step == 0 else vr(b,16)
        return [f"{MFMA} {vr(K[0],16)}, {wk}, {x0}, {c(K[0])}",
                f"{MFMA} {vr(K[1],16)}, {wk}, {x1}, {c(K[1])}",
                f"{MFMA} {vr(V[0],16)}, {x0}, {wv}, {c(V[0])}",
                f"{MFMA} {vr(V[1],16)}, {x1}, {wv}, {c(V[1])}"]
    st('pro')
    a("s_waitcnt vmcnt(0)")
    a("s_barrier")
    st('c0')
    for r in reads(0) + reads(1): a(r)
    WPH = 144
    for step in range(32):
        nstep = step + 2
        rd = []
        if nstep < 32:
            if nstep % 4 == 0:
                a("s_waitcnt lgkmcnt(0)")
                a("s_barrier")
                if nstep // 4 in (2, 4, 7): st(f"c{nstep//4}")
            else:
                a("s_waitcnt lgkmcnt(6)")
            rd = reads(nstep)
        else:
            a("s_waitcnt lgkmcnt(%d)" % (6 if nstep == 32 else 0))
        if step == 5:
            rd = rd + [f"ds_read_b64_tr_b16 {vr(WPH+hh*4+half*2,2)}, v{138+hh} offset:{half*256}" for hh in range(2) for half in range(2)]
        extra = [f"v_xor_b32 v{WPH+i}, v6, v{WPH+i}" for i in range(8)] if step == 7 else []
        m = mfmas(step)
        n = (len(rd) + 2) // 3
        for i in range(4):
            a(m[i])
            for r in rd[n*i:n*i+n] if i < 3 else []: a(r)
            for r in extra[2*i:2*i+2]: a(r)
    st('loop')
    OP = 16
    PT = [160, 176, 192, 208]
    for sb in range(2):
        for hh in range(2):
            cvt8(a, OP + (sb*2+hh)*4, K[sb] + 8*hh)
            a(f"{MFMA} {vr(PT[sb*2+hh],16)}, {vr(WPH+hh*4,4)}, {vr(OP+(sb*2+hh)*4,4)}, 0")
    PH = 64; AT = 32; KV = [160, 176]
    a("s_mov_b64 exec, s[60:61]")
    for sb in range(2):
        for j in range(0, 16, 2):
            a(f"v_cvt_pk_bf16_f32 v{VM+sb*8+j//2}, v{V[sb]+j}, v{V[sb]+j+1}")
    a("s_not_b64 exec, exec")
    for sb in range(2):
        for j in range(0, 16, 2):
            a(f"v_cvt_pk_bf16_f32 v{VM+16+sb*8+j//2}, v{V[sb]+j}, v{V[sb]+j+1}")
    a("s_mov_b64 exec, -1")
    def transp(tile):
        b = (tile & 1) * 2048
        a(f"ds_write_b128 v142, {vr(PH+tile*8,4)} offset:{b}")
        a(f"ds_write_b128 v142, {vr(PH+tile*8+4,4)} offset:{b+16}")
        for t in range(2):
            for half in range(2):
                a(f"ds_read_b64_tr_b16 {vr(AT+tile*8+t*4+half*2,2)}, v143 offset:{b+t*1024+half*512}")
    for i in zip2(softmax(PT[0], PH, 152, 54, 56), softmax(PT[1], PH+8, 156, 54, 56)): a(i)
    transp(0); transp(1)
    sm = zip2(softmax(PT[2], PH+16, 152, 54, 56), softmax(PT[3], PH+24, 156, 54, 56))
    for k, i in enumerate(sm):
        a(i)
        if k == 36: a("s_waitcnt lgkmcnt(0)")
        if k in (36, 42, 48, 54):
            idx = (k - 36) // 6
            hh, t = idx & 1, idx >> 1
            c = "0" if t == 0 else vr(KV[hh],16)
            a(f"{MFMA} {vr(KV[hh],16)}, {vr(AT+hh*8+t*4,4)}, {vr(VM+hh*16+t*4,4)}, {c}")
    transp(3); transp(2)
    a("s_waitcnt lgkmcnt(6)")
    for t in range(2):
        a(f"{MFMA} {vr(KV[1],16)}, {vr(AT+3*8+t*4,4)}, {vr(VM+16+8+t*4,4)}, {vr(KV[1],16)}")
    a("s_waitcnt lgkmcnt(0)")
    for t in range(2):
        a(f"{MFMA} {vr(KV[0],16)}, {vr(AT+2*8+t*4,4)}, {vr(VM+8+t*4,4)}, {vr(KV[0],16)}")
    for q in range(4):
        a(f"ds_write_b128 v4, {vr(KV[1]+q*4,4)} offset:{q*1024}")
    a("s_waitcnt lgkmcnt(0)")
    st('kx')
    a("s_barrier")
    for q in range(4):
        a(f"ds_read_b128 {vr(KV[1]+q*4,4)}, v5 offset:{q*1024}")
    for q in range(4):
        a(f"s_waitcnt lgkmcnt({3-q})")
        for r in range(4*q, 4*q+4):
            a(f"v_add_f32 v{KV[0]+r}, v{KV[0]+r}, v{KV[1]+r}")
        for r in range(4*q, 4*q+4, 2):
            a(f"v_cvt_pk_bf16_f32 v{192+r//2}, v{KV[0]+r}, v{KV[0]+r+1}")
        for r in range(4*q, 4*q+4, 2):
            a(f"v_min_u32 v{192+r//2}, s62, v{192+r//2}")
        if q == 1: a("buffer_store_dwordx4 v[192:195], v140, s[28:31], s59 offen sc1")
    a("buffer_store_dwordx4 v[196:199], v140, s[28:31], s59 offen offset:544 sc1")
    st('pub')
    def rec(i): return 16 + 8*i if i < 14 else 208 + 8*(i-14)
    def ldrec(i):
        a(f"s_add_u32 s8, s58, {i*REC}")
        a(f"buffer_load_dwordx4 {vr(rec(i),4)}, v140, s[28:31], s8 offen sc1")
        a(f"buffer_load_dwordx4 {vr(rec(i)+4,4)}, v140, s[28:31], s8 offen offset:544 sc1")
    for i in range(16): ldrec(i)
    wo_dma(a, 1, 7, 63, 20)
    SEL = 200
    a("v_and_b32 v10, 3, v2")
    a("v_bfe_u32 v12, v2, 3, 2")
    a("v_lshl_add_u32 v10, v12, 2, v10")
    a("v_bfe_u32 v12, v2, 2, 1")
    a("v_xor_b32 v12, v12, v9")
    a("v_lshl_add_u32 v10, v12, 5, v10")
    a("v_and_b32 v12, 1, v10")
    a("v_lshlrev_b32 v12, 4, v12")
    a("v_mov_b32 v13, 0x3f80")
    a("v_lshlrev_b32 v12, v12, v13")
    a("v_lshrrev_b32 v10, 1, v10")
    for i in range(8):
        a(f"v_cmp_eq_u32 vcc, {i}, v10")
        a(f"v_cndmask_b32 v{SEL+i}, 0, v12, vcc")
    D = 160
    for i in range(16): a(f"v_mov_b32 v{D+i}, 0")
    a("v_bfe_u32 v12, v2, 2, 2")
    a("v_lshl_add_u32 v12, v9, 2, v12")
    a("v_lshlrev_b32 v12, 7, v12")
    a("v_bfe_u32 v13, v2, 1, 1")
    a("v_lshl_add_u32 v12, v13, 3, v12")
    a("v_and_b32 v13, 1, v2")
    a("v_lshlrev_b32 v13, 2, v13")
    a("v_bfe_u32 v14, v2, 4, 1")
    a("v_or_b32 v13, v13, v14")
    a("v_bfe_u32 v14, v2, 3, 1")
    a("v_lshlrev_b32 v14, 1, v14")
    a("v_xor_b32 v13, v13, v14")
    a("v_lshl_add_u32 v14, v13, 4, v12")
    a("v_xor_b32 v15, 32, v14")
    a("v_lshlrev_b32 v12, 11, v3")
    a("v_lshl_add_u32 v12, v9, 6, v12")
    a("s_lshl_b32 s49, s6, 18")
    a("s_lshl_b32 s8, s9, 16")
    a("s_add_u32 s49, s49, s8")
    a("s_lshl_b32 s8, s5, 10")
    a("s_add_u32 s49, s49, s8")
    a("s_add_u32 s49, s49, s46")
    a("s_lshl_b32 s8, s47, 11")
    a(f"s_add_u32 s8, s8, {SCR_K}")
    a("v_add_u32 v13, s8, v141")
    def chk8(b):
        a(f"v_max3_u32 v10, v{b}, v{b+1}, v{b+2}")
        a(f"v_max3_u32 v11, v{b+3}, v{b+4}, v{b+5}")
        a(f"v_max3_u32 v10, v10, v{b+6}, v{b+7}")
        a("v_max_u32 v10, v10, v11")
        a("v_cmp_eq_u32 vcc, -1, v10")
        a("s_nop 1")
    def recmm(i):
        for t in range(2):
            a(f"{MFMA} {vr(D,16)}, {vr(SEL+t*4,4)}, {vr(rec(i)+t*4,4)}, {vr(D,16)}")
    a("s_mov_b32 s64, 0")
    a("s_mov_b32 s65, 0")
    for i in range(16):
        a(f"s_waitcnt vmcnt({30-2*i+8})")
        chk8(rec(i))
        a(f"s_cbranch_vccz K_r1ok{i}")
        a(f"s_bitset1_b32 s64, {i}")
        a(f"s_branch K_r1nx{i}")
        a(f"K_r1ok{i}:")
        recmm(i)
        a(f"K_r1nx{i}:")
    a("K_rloop:")
    a("s_cmp_eq_u32 s64, 0")
    a("s_cbranch_scc1 K_rdone")
    a("s_add_u32 s65, s65, 1")
    a(f"s_cmp_ge_u32 s65, {SPIN}")
    a("s_cbranch_scc1 K_rdone")
    for i in range(16):
        a(f"s_bitcmp0_b32 s64, {i}")
        a(f"s_cbranch_scc1 K_r2l{i}")
        ldrec(i)
        a(f"K_r2l{i}:")
    a("s_waitcnt vmcnt(0)")
    for i in range(16):
        a(f"s_bitcmp0_b32 s64, {i}")
        a(f"s_cbranch_scc1 K_r2c{i}")
        chk8(rec(i))
        a(f"s_cbranch_vccnz K_r2c{i}")
        a(f"s_bitset0_b32 s64, {i}")
        recmm(i)
        a(f"K_r2c{i}:")
    a("s_branch K_rloop")
    a("K_rdone:")
    a("s_nop 15")
    st('red')
    for r in range(0, 16, 2):
        a(f"v_cvt_pk_bf16_f32 v{176+r//2}, v{D+r}, v{D+r+1}")
    a("ds_write_b128 v13, v[176:179]")
    a("ds_write_b128 v13, v[180:183] offset:1024")
    a("s_waitcnt vmcnt(0) lgkmcnt(0)")
    a("s_barrier")
    DO = [160, 176]
    for i in range(32): a(f"v_mov_b32 v{160+i}, 0")
    a("s_barrier")
    st('bo')
    def of(h): return 16 + 4*h if h < 28 else 208 + 4*(h-28)
    def ldo(g):
        a(f"s_add_u32 s8, s37, {g*4096}")
        for j in range(4):
            a(f"buffer_load_dwordx4 {vr(of(4*g+j),4)}, v141, s[28:31], s8 offen offset:{j*1024} sc1")
    WF = 224
    def wreads(g):
        for j in range(4):
            h = 4*g + j
            for t in range(2):
                for half in range(2):
                    a(f"ds_read_b64_tr_b16 {vr(WF+j*8+t*4+half*2,2)}, v{14+t} offset:{h*2048+half*1024}")
    def chk16(g):
        b = of(4*g)
        a(f"v_max3_u32 v10, v{b}, v{b+1}, v{b+2}")
        a(f"v_max3_u32 v11, v{b+3}, v{b+4}, v{b+5}")
        for k in range(6, 16, 4):
            a(f"v_max3_u32 v10, v10, v{b+k}, v{b+k+1}")
            if k + 3 < 16: a(f"v_max3_u32 v11, v11, v{b+k+2}, v{b+k+3}")
        a("v_max_u32 v10, v10, v11")
        a("v_cmp_eq_u32 vcc, -1, v10")
        a("s_nop 1")
    def omm(g):
        for j in range(4):
            a(f"s_waitcnt lgkmcnt({12-4*j})")
            for t in range(2):
                a(f"{MFMA} {vr(DO[t],16)}, {vr(WF+j*8+t*4,4)}, {vr(of(4*g+j),4)}, {vr(DO[t],16)}")
    for g in range(8): ldo(g)
    a("s_mov_b32 s64, 0")
    a("s_mov_b32 s68, s65")
    a("s_mov_b32 s65, 0")
    for g in range(8):
        wreads(g)
        a(f"s_waitcnt vmcnt({28-4*g})")
        chk16(g)
        a(f"s_cbranch_vccz K_o1ok{g}")
        a(f"s_bitset1_b32 s64, {g}")
        a("s_waitcnt lgkmcnt(0)")
        a(f"s_branch K_o1nx{g}")
        a(f"K_o1ok{g}:")
        omm(g)
        a(f"K_o1nx{g}:")
    a("K_oloop:")
    a("s_cmp_eq_u32 s64, 0")
    a("s_cbranch_scc1 K_odone")
    a("s_add_u32 s65, s65, 1")
    a(f"s_cmp_ge_u32 s65, {SPIN}")
    a("s_cbranch_scc1 K_odone")
    for g in range(8):
        a(f"s_bitcmp0_b32 s64, {g}")
        a(f"s_cbranch_scc1 K_o2l{g}")
        ldo(g)
        a(f"K_o2l{g}:")
    a("s_waitcnt vmcnt(0)")
    for g in range(8):
        a(f"s_bitcmp0_b32 s64, {g}")
        a(f"s_cbranch_scc1 K_o2c{g}")
        chk16(g)
        a(f"s_cbranch_vccnz K_o2c{g}")
        a(f"s_bitset0_b32 s64, {g}")
        wreads(g)
        omm(g)
        a(f"K_o2c{g}:")
    a("s_branch K_oloop")
    a("K_odone:")
    a("s_nop 15")
    st("mm")
    for t in range(2):
        for r in range(0, 16, 2):
            a(f"v_cvt_pk_bf16_f32 v{192+t*8+r//2}, v{DO[t]+r}, v{DO[t]+r+1}")
        a(f"buffer_store_dwordx4 {vr(192+t*8,4)}, v12, s[24:27], s49 offen offset:{t*32}")
        a(f"buffer_store_dwordx4 {vr(192+t*8+4,4)}, v12, s[24:27], s49 offen offset:{t*32+16}")
    if STAMPS:
        a("s_waitcnt lgkmcnt(0)")
        a("s_mul_i32 s68, s68, 100")
        a("s_mul_i32 s65, s65, 100")
        st.n += 1; st.names.append("nr")
        a(f"s_add_u32 s{70+2*(st.n-1)}, s70, s68")
        st.dump(vt=16)
    a("s_branch K_end")

    a.label("K_loader")
    a.hist = []
    st2 = Stamps(a, STAMPS, 0); st2.n = 1; st2.names = ['start']; NAMES.append(st2.names)
    a("s_sub_u32 s10, s9, 4")
    XV = 4; WV = 8
    a("v_lshrrev_b32 v3, 3, v2")
    a("v_and_b32 v12, 7, v2")
    a("v_lshrrev_b32 v10, 1, v3")
    a("v_xor_b32 v11, v12, v10")
    a("v_lshlrev_b32 v11, 4, v11")
    a(f"v_lshl_add_u32 v{XV}, v3, 10, v11")
    a(f"v_xor_b32 v{XV+1}, 64, v{XV}")
    a(f"v_add_u32 v{XV+2}, {2*7168}, v{XV}")
    a(f"v_add_u32 v{XV+3}, {3*7168}, v{XV+1}")
    a(f"v_add_u32 v{XV+1}, {7168}, v{XV+1}")
    a("v_and_b32 v11, 1, v10")
    a("v_lshlrev_b32 v11, 2, v11")
    a("v_xor_b32 v11, v12, v11")
    a("v_lshlrev_b32 v11, 4, v11")
    a("v_mul_u32_u24 v13, 3072, v3")
    a(f"v_add_u32 v{WV}, v11, v13")
    a("s_lshl_b32 s36, s6, 17")
    a("s_lshl_b32 s8, s10, 15")
    a("s_add_u32 s36, s36, s8")
    a("s_mul_i32 s8, s10, 49152")
    a("s_add_u32 s37, s46, s8")
    a("s_add_u32 s37, s37, 1024")
    a("s_lshl_b32 s38, s10, 13")
    a("v_lshlrev_b32 v14, 4, v2")
    a("s_lshl_b32 s47, s7, 11")
    a("s_memrealtime s[48:49]")
    a("s_waitcnt lgkmcnt(0)")
    srd(a, 20, 12, 0x200000)
    srd(a, 24, 14, 0x180000)
    def dma_chunk(t):
        slot = t % 3
        a(f"s_add_u32 s39, s66, {t}")
        a("s_and_b32 s39, s39, 7")
        a("s_lshl_b32 s51, s39, 7")
        a("s_add_u32 s51, s51, s36")
        a(f"s_add_u32 m0, s38, {slot*SLOT}")
        a("s_mul_i32 s52, s39, 196608")
        for i in range(4):
            a(f"buffer_load_dwordx4 v{XV+i}, s[20:23], s51 offen offset:{i*1024} lds")
        a("s_add_u32 s52, s52, s37")
        a(f"s_add_u32 m0, s38, {slot*SLOT+4096}")
        a(f"s_add_u32 s53, s52, {24576-2048}")
        for e in range(4):
            a(f"buffer_load_dwordx4 v{WV}, s[24:27], s{52+e//2} offen offset:{e*1024} lds")
    st2('pro')
    srd(a, 60, 42, 0x100)
    a("v_mov_b32 v15, 0")
    a("s_or_b32 s8, s2, s10")
    a("s_cmp_lg_u32 s8, 0")
    a("s_cbranch_scc1 K_nolead")
    a("s_or_b32 s48, s48, 1")
    a("v_mov_b32 v40, s48")
    a("s_mov_b64 exec, 1")
    a("buffer_store_dword v40, v15, s[60:63], 0 offen sc1")
    a("s_mov_b64 exec, -1")
    a("K_nolead:")
    dma_chunk(0)
    srd(a, 32, 16, 0x4000)
    a("s_and_b32 s8, s10, 1")
    a("s_lshl_b32 s8, s8, 10")
    a(f"s_add_u32 m0, s8, {WPHI_LDS}")
    a("s_add_u32 s8, s8, s47")
    a("buffer_load_dwordx4 v14, s[32:35], s8 offen lds")
    srd(a, 28, 44, 0x10000000)
    XA = 16
    a("v_and_b32 v3, 31, v2")
    a("v_bfe_u32 v10, v2, 1, 3")
    for ks in range(4):
        a(f"v_or_b32 v11, {2*ks}, v9")
        a("v_xor_b32 v11, v11, v10")
        a("v_lshlrev_b32 v11, 4, v11")
        a("v_lshl_add_u32 v11, v3, 7, v11")
        a(f"v_add_u32 v{XA+ks}, s38, v11")
        a(f"v_add_u32 v{XA+4+ks}, 65536, v{XA+ks}")
    XF = 128
    WPH = 24
    wphi_addr(a, 13)
    a(f"v_add_u32 v13, {WPHI_LDS}, v13")
    a("v_lshl_add_u32 v10, v2, 3, s7")
    a("s_lshl_b32 s8, s6, 3")
    a("v_and_b32 v11, 7, v2")
    a("v_add_u32 v11, s8, v11")
    a("v_cmp_gt_u32 vcc, 16, v2")
    a("v_cndmask_b32 v10, v11, v10, vcc")
    a("v_lshlrev_b32 v41, 7, v10")
    a("s_lshl_b32 s50, s5, 14")
    a(f"s_add_u32 s50, s50, {FLAG:#x}")
    a("s_add_u32 s8, s8, s7")
    a("s_lshl_b32 s8, s8, 7")
    a("s_add_u32 s58, s50, s8")
    wo_voff(a, 43)
    def wq_loads(i0, i1):
        for i in range(i0, i1):
            a(f"s_add_u32 s8, s68, {4*i}")
            a("s_and_b32 s8, s8, 63")
            a("s_mul_i32 s8, s8, 24576")
            a(f"s_add_u32 m0, s64, {WQ + i*4096}")
            a("s_add_u32 s8, s8, s46")
            a(f"buffer_load_dwordx4 v{WV}, s[24:27], s8 offen lds")
    a("s_lshl_b32 s68, s66, 3")
    a("s_add_u32 s68, s68, s10")
    a("s_lshl_b32 s64, s10, 10")
    a("s_lshl_b32 s65, s67, 2")
    a("s_add_u32 s65, s65, s10")
    for n in range(1, 9):
        a("s_waitcnt lgkmcnt(0)")
        if n == 3:
            a("s_cmp_lg_u32 s10, 0")
            a("s_cbranch_scc1 K_h1")
            a("buffer_load_dword v40, v15, s[60:63], 0 offen sc1")
            a("K_h1:")
        if n == 4:
            a("s_cmp_lg_u32 s10, 0")
            a("s_cbranch_scc1 K_h2")
            a("s_mov_b32 s59, 0")
            a("K_h2l:")
            a("v_readfirstlane_b32 s48, v40")
            a("s_cmp_lg_u32 s48, 0")
            a("s_cbranch_scc1 K_h2ok")
            a("buffer_load_dword v40, v15, s[60:63], 0 offen sc1")
            a("s_add_u32 s59, s59, 1")
            a("s_waitcnt vmcnt(0)")
            a(f"s_cmp_lt_u32 s59, {SPIN}")
            a("s_cbranch_scc1 K_h2l")
            a("K_h2ok:")
            a("s_mov_b64 exec, 1")
            a("buffer_store_dword v40, v15, s[28:31], s58 offen sc1")
            a("s_mov_b64 exec, -1")
            a("K_h2:")
        if n < 8: dma_chunk(n)
        else: wq_loads(0, 8)
        a("s_waitcnt vmcnt(8)")
        a("s_barrier")
        t = n - 1
        slot = t % 3
        for ks in range(4):
            a(f"ds_read_b128 {vr(XF+t*16+ks*4,4)}, v{XA+(4 if slot==2 else 0)+ks} offset:{SLOT if slot==1 else 0}")
        if n == 1:
            for j in range(4):
                for half in range(2):
                    a(f"ds_read_b64_tr_b16 {vr(WPH+j*4+half*2,2)}, v13 offset:{j*512+half*256}")
    wq_loads(8, 16)
    a("s_cmp_lg_u32 s10, 0")
    a("s_cbranch_scc1 K_h3")
    a("buffer_load_dword v42, v41, s[28:31], s50 offen sc1")
    a("K_h3:")
    srd(a, 32, 18, 0x80000)
    wo_dma(a, 0, 43, 65, 32)
    st2('iss')
    a("v_bfe_u32 v10, v2, 4, 1")
    a("v_lshlrev_b32 v10, 1, v10")
    a("v_bfe_u32 v11, v2, 1, 1")
    a("v_or_b32 v10, v10, v11")
    a("v_bfe_u32 v11, v2, 3, 1")
    a("v_lshlrev_b32 v11, 2, v11")
    a("v_xor_b32 v10, v10, v11")
    a("v_lshlrev_b32 v10, 4, v10")
    a("v_and_b32 v11, 1, v2")
    a("v_lshl_add_u32 v10, v11, 3, v10")
    a("v_bfe_u32 v11, v2, 2, 2")
    a("v_lshl_add_u32 v10, v11, 7, v10")
    a("v_lshl_add_u32 v10, v9, 10, v10")
    a(f"v_add_u32 v10, {WQ}, v10")
    a("v_xor_b32 v11, 64, v10")
    signmask(a, 12)
    for i in range(16): a(f"v_xor_b32 v{WPH+i}, v12, v{WPH+i}")
    a("s_lshl_b32 s8, s5, 6")
    a("s_lshl_b32 s59, s6, 2")
    a("s_add_u32 s8, s8, s59")
    a("s_add_u32 s8, s8, s10")
    a("s_lshl_b32 s37, s8, 15")
    a("s_lshl_b32 s8, s7, 12")
    a("s_add_u32 s37, s37, s8")
    a(f"s_add_u32 s37, s37, {OFR:#x}")
    a("s_movk_i32 s39, -2")
    a("s_waitcnt vmcnt(8) lgkmcnt(0)")
    a("s_cmp_lg_u32 s10, 0")
    a("s_cbranch_scc1 K_h4")
    a("s_mov_b32 s59, 0")
    a("K_h4l:")
    a("v_cmp_ne_u32 vcc, v40, v42")
    a("s_nop 1")
    a("s_cbranch_vccz K_h4")
    a("buffer_load_dword v42, v41, s[28:31], s50 offen sc1")
    a("s_add_u32 s59, s59, 1")
    a("s_waitcnt vmcnt(0)")
    a(f"s_cmp_lt_u32 s59, {SPIN}")
    a("s_cbranch_scc1 K_h4l")
    a("K_h4:")
    st2('wq')
    a("s_barrier")
    st2('bx')
    Q = [40, 56]
    QF = [72, 80, 88, 96]
    def qreads(step):
        fs = QF[step % 4]
        return [f"ds_read_b64_tr_b16 {vr(fs+p*4+half*2,2)}, v{10+p} offset:{step*2048+half*512}" for p in range(2) for half in range(2)]
    for s in range(3):
        for r in qreads(s): a(r)
    for step in range(32):
        a(f"s_waitcnt lgkmcnt({min(2, 31-step)*4})")
        fs = QF[step % 4]
        rd = qreads(step + 3) if step + 3 < 32 else []
        for p in range(2):
            c = "0" if step == 0 else vr(Q[p],16)
            a(f"{MFMA} {vr(Q[p],16)}, {vr(fs+p*4,4)}, {vr(XF+step*4,4)}, {c}")
            for r in rd[2*p:2*p+2]: a(r)
    st2('qmm')
    OP = 72
    PT = [128, 144, 160, 176]
    for j in range(4):
        cvt8(a, OP + j*4, Q[j>>1] + 8*(j&1))
        a(f"{MFMA} {vr(PT[j],16)}, {vr(WPH+j*4,4)}, {vr(OP+j*4,4)}, 0")
    PHQ = 192
    for j in (0, 2):
        for i in zip2(softmax(PT[j], PHQ + j*8, 104, 54, 56), softmax(PT[j+1], PHQ + j*8 + 8, 108, 54, 56)): a(i)
    a(f"v_add_u32 v10, {SCR_K}, v14")
    a("s_waitcnt vmcnt(0)")
    st2('qsm')
    a("s_barrier")
    st2('bkv')
    KO = 40
    for j in range(4):
        a(f"ds_read_b128 {vr(KO+j*8,4)}, v10 offset:{j*2048}")
        a(f"ds_read_b128 {vr(KO+j*8+4,4)}, v10 offset:{j*2048+1024}")
    for j in range(4):
        a(f"s_waitcnt lgkmcnt({6-2*j})")
        for t in range(2):
            c = "0" if t == 0 else vr(PT[j],16)
            a(f"{MFMA} {vr(PT[j],16)}, {vr(KO+j*8+t*4,4)}, {vr(PHQ+j*8+t*4,4)}, {c}")
    for j in range(4):
        n = PT[j]
        a(f"v_add_f32 v{n+8}, 0x358637bd, v{n+8}")
        a(f"v_rcp_f32 v{n+8}, v{n+8}")
        for r in range(8):
            a(f"v_mul_f32 v{n+r}, v{n+8}, v{n+r}")
        for r in range(0, 8, 2):
            a(f"v_cvt_pk_bf16_f32 v{n+12+r//2}, v{n+r}, v{n+r+1}")
        for r in range(4):
            a(f"v_min_u32 v{n+12+r}, s39, v{n+12+r}")
        a(f"buffer_store_dwordx4 {vr(n+12,4)}, v14, s[28:31], s37 offen offset:{j*1024} sc1")
    st2('ost')
    a("s_barrier")
    st2.dump(vt=16)
    a.label("K_end")
    return a

if __name__ == "__main__":
    A = kern()
    print("nops", A.nops)
    txt = kernel_file([(NAME + "_kernel", A.text(), 256, 256, 102)], [(NAME + "_kernel", 256, 512, 163840)])
    open(sys.argv[1], "w").write(txt)
    json.dump(NAMES, open('names.json', 'w'))
```

```python
from asmlib import *
def amp_kernel(A, B, amp, base=64 << 20):
    a = Asm()
    a("s_cmp_ge_u32 s2, 1")
    a("s_cbranch_scc1 AMP_end")
    a("s_load_dwordx2 s[44:45], s[0:1], 80")
    a("v_lshlrev_b32 v1, 9, v0")
    a("s_waitcnt lgkmcnt(0)")
    a("s_mov_b32 s28, s44\ns_mov_b32 s29, s45\ns_mov_b32 s30, 0x10000000\ns_mov_b32 s31, 0x20000")
    for n, (kid, idx, mode) in enumerate((A, B)):
        for j in range(4):
            a(f"s_mov_b32 s8, {base + kid*256*512 + j*64*512 + idx*4:#x}")
            a(f"buffer_load_dword v{4+n*4+j}, v1, s[28:31], s8 offen")
    a("s_waitcnt vmcnt(0)")
    for n, (kid, idx, mode) in enumerate((A, B)):
        op = "v_min_u32" if mode == "min" else "v_max_u32"
        sop = "s_min_u32" if mode == "min" else "s_max_u32"
        b = 4 + n*4
        a(f"{op} v{b}, v{b}, v{b+1}")
        a(f"{op} v{b+2}, v{b+2}, v{b+3}")
        a(f"{op} v{b}, v{b}, v{b+2}")
        a(f"v_readlane_b32 s{10+n}, v{b}, 0")
        for l in range(1, 64):
            a(f"v_readlane_b32 s12, v{b}, {l}")
            a("s_nop 3")
            a(f"{sop} s{10+n}, s{10+n}, s12")
    a("s_sub_u32 s13, s11, s10")
    a("s_min_u32 s13, s13, 5000")
    a(f"s_mul_i32 s13, s13, {amp}")
    a("s_memrealtime s[14:15]")
    a("s_waitcnt lgkmcnt(0)")
    a("AMP_loop:")
    a("s_memrealtime s[16:17]")
    a("s_waitcnt lgkmcnt(0)")
    a("s_sub_u32 s18, s16, s14")
    a("s_cmp_lt_u32 s18, s13")
    a("s_cbranch_scc1 AMP_loop")
    a.label("AMP_end")
    return a
```

```python
import re
NAME = "concat_heads__linear_kernel_hedgehog__linear_kernel_hedgehog__prompt"

_REG = re.compile(r'^(-|\|)?(abs\()?([vas])(?:(\d+)|\[(\d+):(\d+)\])')

def regs_of(tok):
    tok = tok.strip()
    if tok in ("vcc",): return {("s", 106), ("s", 107)}
    if tok == "vcc_lo": return {("s", 106)}
    if tok == "vcc_hi": return {("s", 107)}
    if tok == "exec": return {("s", 126), ("s", 127)}
    if tok == "m0": return {("s", 124)}
    m = _REG.match(tok)
    if not m: return set()
    k = m.group(3)
    if m.group(4) is not None:
        return {(k, int(m.group(4)))}
    return {(k, i) for i in range(int(m.group(5)), int(m.group(6)) + 1)}

def split_ops(s):
    out, depth, cur = [], 0, ""
    for ch in s:
        if ch in "[(": depth += 1
        if ch in "])": depth -= 1
        if ch == "," and depth == 0:
            out.append(cur.strip()); cur = ""
        else:
            cur += ch
    if cur.strip(): out.append(cur.strip())
    return out

TRANS = ("v_exp_f32", "v_log_f32", "v_rcp_f32", "v_rsq_f32", "v_sqrt_f32", "v_sin_f32", "v_cos_f32", "v_rcp_iflag_f32")

class Ins:
    def __init__(self, text):
        self.text = text
        t = text.split(";")[0].strip()
        parts = t.split(None, 1)
        self.mn = parts[0]
        ops = split_ops(parts[1]) if len(parts) > 1 else []
        self.mods = ""
        ops2 = []
        for o in ops:
            pieces = o.split()
            ops2.append(pieces[0])
            if len(pieces) > 1: self.mods += " " + " ".join(pieces[1:])
        ops = ops2
        self.ops = ops
        mn = re.sub(r"_e(32|64)$", "", self.mn)
        self.base = mn
        self.w, self.r = set(), set()
        self.kind = "other"
        self.passes = 0
        self.srcc = set(); self.srcab = set()
        self.ws = 1
        if mn == "s_nop":
            self.kind = "nop"; self.ws = int(ops[0], 0) + 1
        elif mn.startswith("v_mfma"):
            self.kind = "mfma"
            self.passes = 8 if "32x32" in mn else 4
            self.w = regs_of(ops[0]); self.srcab = regs_of(ops[1]) | regs_of(ops[2]); self.srcc = regs_of(ops[3])
            self.r = self.srcab | self.srcc
        elif mn.startswith("v_cmp"):
            self.kind = "valu"; self.w = regs_of(ops[0])
            if mn.startswith("v_cmpx"): self.w |= regs_of("exec")
            for o in ops[1:]: self.r |= regs_of(o)
        elif mn in ("v_readfirstlane_b32", "v_readlane_b32"):
            self.kind = "valu"; self.sub = "readlane"; self.w = regs_of(ops[0])
            for o in ops[1:]: self.r |= regs_of(o)
        elif mn.startswith("v_permlane") and "swap" in mn:
            self.kind = "valu"; self.w = regs_of(ops[0]) | regs_of(ops[1]); self.r = set(self.w)
        elif mn.startswith("v_"):
            self.kind = "valu"
            self.w = regs_of(ops[0])
            rest = ops[1:]
            if mn in ("v_add_co_u32", "v_sub_co_u32", "v_addc_co_u32", "v_subb_co_u32", "v_mad_u64_u32", "v_div_scale_f32"):
                self.w |= regs_of(ops[1]); rest = ops[2:]
            for o in rest: self.r |= regs_of(o)
            if mn in ("v_fmac_f32", "v_pk_fmac_f16", "v_dot2c_f32_bf16", "v_writelane_b32") : self.r |= regs_of(ops[0])
            if mn == "v_cndmask_b32" and len(ops) == 3: self.r |= regs_of("vcc")
        elif mn.startswith("ds_"):
            self.kind = "ds"
            if mn.startswith("ds_read") or mn.startswith("ds_bpermute") or mn.startswith("ds_permute") or mn.startswith("ds_swizzle"):
                self.w = regs_of(ops[0])
                for o in ops[1:]: self.r |= regs_of(o)
            else:
                for o in ops: self.r |= regs_of(o)
        elif mn.startswith("buffer_") or mn.startswith("global_"):
            self.kind = "vmem"
            islds = " lds" in (" " + self.mods) or "_lds_" in mn
            self.islds = islds
            if mn.startswith("buffer_load") and not islds:
                self.w = regs_of(ops[0])
                for o in ops[1:]: self.r |= regs_of(o)
                if "d16" in mn: self.r |= regs_of(ops[0])
            elif mn.startswith("global_load") and not islds:
                self.w = regs_of(ops[0])
                for o in ops[1:]: self.r |= regs_of(o)
            else:
                for o in ops: self.r |= regs_of(o)
                if "atomic" in mn and "sc0" in self.mods: self.w = regs_of(ops[0])
            if islds: self.r |= regs_of("m0")
            self.widestore = ("store" in mn and ("x3" in mn or "x4" in mn))
            if self.widestore:
                self.sdata = regs_of(ops[0]) if mn.startswith("buffer") else regs_of(ops[1])
        elif mn.startswith("s_"):
            self.kind = "salu"
            if mn.startswith("s_cmp") or mn.startswith("s_cbranch") or mn in ("s_branch", "s_waitcnt", "s_barrier", "s_endpgm", "s_setprio", "s_sleep"):
                for o in ops: self.r |= regs_of(o)
            else:
                if ops: self.w = regs_of(ops[0])
                for o in ops[1:]: self.r |= regs_of(o)
                if "saveexec" in mn: self.w |= regs_of("exec")
        self.trans = mn in TRANS
        self.dpp = any(x in self.mods for x in ("row_", "quad_perm", "wave_", "row_bcast", "row_mirror", "row_half"))

def need(prod, cons):
    n = 0
    vw = {x for x in prod.w if x[0] in "va"}
    sw = {x for x in prod.w if x[0] == "s"}
    if prod.kind == "valu":
        if cons.kind == "mfma" and vw & cons.r: n = max(n, 2)
        if cons.kind == "mfma" and sw & regs_of("exec"): n = max(n, 4)
        if prod.trans and cons.kind == "valu" and not cons.trans and vw & (cons.r | cons.w): n = max(n, 1)
        if prod.trans and cons.kind in ("ds", "vmem") and vw & cons.r: n = max(n, 1)
        if cons.kind == "valu" and sw & cons.r: n = max(n, 4 if cons.base in ("v_readlane_b32", "v_writelane_b32") else 2)
        if cons.kind == "vmem" and sw & cons.r: n = max(n, 5)
        if cons.kind == "salu" and sw & cons.r: n = max(n, 1)
        if cons.kind == "valu" and cons.base in ("v_readfirstlane_b32", "v_readlane_b32") and vw & cons.r: n = max(n, 1)
        if cons.kind == "valu" and (cons.dpp or cons.base.startswith("v_permlane")) and vw & cons.r: n = max(n, 2)
        if cons.kind == "valu" and (cons.dpp or cons.base.startswith("v_permlane") or cons.base in ("v_readfirstlane_b32", "v_readlane_b32")) and sw & regs_of("exec"): n = max(n, 5)
        if ("op_sel" in prod.mods or "sdwa" in prod.mn) and cons.kind == "valu" and vw & (cons.r | cons.w): n = max(n, 1)
    if prod.kind == "mfma":
        P = prod.passes
        big = {8: 12, 4: 8}[P]
        if cons.kind == "mfma":
            if prod.w & cons.srcab: n = max(n, big)
            if prod.w & cons.srcc:
                if not (cons.srcc == prod.w and cons.passes == P): n = max(n, {8: 10, 4: 6}[P])
            elif prod.w & cons.w:
                n = max(n, big)
        elif cons.kind in ("valu", "ds", "vmem"):
            if prod.w & (cons.r | cons.w): n = max(n, big)
            if cons.kind == "valu" and prod.srcc & cons.w: n = max(n, {8: 7, 4: 3}[P])
    if prod.kind == "salu":
        if cons.kind == "vmem" and getattr(cons, "islds", False) and sw & regs_of("m0"): n = max(n, 1)
    if prod.kind == "vmem" and getattr(prod, "widestore", False):
        if prod.sdata & cons.w: n = max(n, 2 if cons.kind in ("valu", "mfma") else 1)
    return n

class Asm:
    def __init__(self, pad=True):
        self.lines = []
        self.hist = []
        self.lbl = 0
        self.pad = pad
        self.nops = 0
    def _emit(self, l):
        ins = Ins(l)
        if self.pad and ins.kind != "nop":
            dist = 0; req = 0
            for p in reversed(self.hist):
                k = need(p, ins)
                if k > dist: req = max(req, k - dist)
                dist += p.ws
                if dist > 24: break
            while req > 0:
                k = min(req, 16)
                nop = Ins(f"s_nop {k-1}")
                self.lines.append(f"    s_nop {k-1}")
                self.hist.append(nop); self.nops += k
                req -= k
        self.lines.append("    " + l)
        self.hist.append(ins)
        if len(self.hist) > 64: self.hist = self.hist[-40:]
    def __call__(self, s):
        for l in s.strip("\n").split("\n"):
            l = l.strip()
            if not l: continue
            if l.startswith(";") or l.startswith("."):
                self.lines.append("    " + l)
            elif l.endswith(":"):
                self.lines.append(l)
            else:
                self._emit(l)
    def label(self, name):
        self.lines.append(name + ":")
    def newlabel(self, p="L"):
        self.lbl += 1
        return f"{p}_{self.lbl}"
    def comment(self, s):
        self.lines.append("    ; " + s)
    def text(self):
        return "\n".join(self.lines) + "\n"

HEADER = """; Kernarg layout for this problem (88 bytes, ptrs only, base s[0:1]):
"""

def kernel_file(kernels, launches):
    out = HEADER
    if len(launches) == 1 and launches[0][0] == NAME + "_kernel":
        l, g, b, lds = launches[0]
        out += f"; @launch grid=({g},1,1) block=({b},1,1) lds={lds}\n"
    else:
        for l, g, b, lds in launches:
            out += f"; @launch kernel={l} grid=({g},1,1) block=({b},1,1) lds={lds}\n"
    out += '.amdgcn_target "amdgcn-amd-amdhsa--gfx950"\n.text\n'
    for label, body, nv, acc, ns in kernels:
        out += f".globl {label}\n.p2align 8\n.type {label},@function\n{label}:\n"
        out += body
        out += "    s_endpgm\n"
    out += '.section .rodata,"a"\n'
    for label, body, nv, acc, ns in kernels:
        out += f""".p2align 6
.amdhsa_kernel {label}
  .amdhsa_next_free_vgpr {nv}
  .amdhsa_next_free_sgpr {ns}
  .amdhsa_accum_offset {acc}
  .amdhsa_group_segment_fixed_size 0
  .amdhsa_kernarg_size 88
  .amdhsa_user_sgpr_count 2
  .amdhsa_user_sgpr_kernarg_segment_ptr 1
  .amdhsa_system_sgpr_workgroup_id_x 1
.end_amdhsa_kernel
"""
    return out

class Stamps:
    detail = False
    skip = set()
    def __init__(self, a, enabled, kid, base=64 << 20):
        self.a, self.en, self.kid, self.base, self.n = a, enabled, kid, base, 0
        self.names = []
    def __call__(self, name):
        if not self.en: return
        if name.startswith("_"):
            if not Stamps.detail: return
        elif Stamps.detail and name in Stamps.skip: return
        assert self.n < 14
        self.a(f"s_memrealtime s[{70+2*self.n}:{71+2*self.n}]")
        self.names.append(name); self.n += 1
    def dump(self, srd="s[28:31]", wave="s9", lane="v2", vt=0):
        if not self.en: return
        a = self.a
        a("s_waitcnt vmcnt(0)")
        self("end")
        a("s_waitcnt lgkmcnt(0)")
        a(f"s_add_u32 s98, s2, {self.kid*256}")
        a("s_lshl_b32 s98, s98, 3")
        a(f"s_add_u32 s98, s98, {wave}")
        a("s_lshl_b32 s98, s98, 6")
        a(f"s_add_u32 s98, s98, {self.base:#x}")
        a(f"v_cmp_eq_u32 vcc, 0, {lane}")
        a("s_and_saveexec_b64 s[100:101], vcc")
        a(f"v_mov_b32 v{vt+16}, 0")
        for i in range(16):
            src = f"s{70+2*i}" if i < self.n else "0"
            ex = getattr(self, "extra", [])
            if i >= 14 and len(ex) > i - 14: src = ex[i-14]
            a(f"v_mov_b32 v{vt+i}, {src}")
        for q in range(4):
            a(f"buffer_store_dwordx4 v[{vt+4*q}:{vt+4*q+3}], v{vt+16}, {srd}, s98 offen offset:{16*q}")
        a("s_mov_b64 exec, s[100:101]")
```

```python
import sys, importlib, json
genname = sys.argv[1]; extra = sys.argv[2:]
sys.argv = [genname, "--stamps"] + extra
G = importlib.import_module(genname)
from asmlib import *
from amp import amp_kernel
A = G.kern()
names = G.NAMES[0]
print(names)
ks = [("main_kernel", A.text(), 256, 256, 102)]
ls = [("main_kernel", 256, 512, 163840)]
def mk(name, P, Q, amp):
    am = amp_kernel(P, Q, amp)
    open(name, "w").write(kernel_file(ks + [("amp_kernel", am.text(), 32, 32, 64)], ls + [("amp_kernel", 1, 64, 0)]))
mk("a0.s", (0,0,"min"), (0,names.index("end"),"max"), 0)
for i, n in enumerate(["end", "c0", "loop", "pub", "red"]):
    mk(f"a{i+1}.s", (0,0,"min"), (0,names.index(n),"max"), 4)
for i, n in enumerate(["start", "pro", "c4", "kx", "oa", "mm"]):
    mk(f"b{i}.s", (0,0,"min"), (0,names.index(n),"max"), 4)
```
